```python
import torch

def _softmax(x, axis=-1):
    return torch.softmax(x, dim=axis)
def _gelu(x):
    return torch.nn.functional.gelu(x, approximate="tanh")
def _silu(x):
    return torch.nn.functional.silu(x)
def _sigmoid(x):
    return torch.sigmoid(x)
def _layernorm(x, axis=-1, eps=1e-5):
    m = x.mean(dim=axis, keepdim=True)
    v = x.var(dim=axis, keepdim=True, unbiased=False)
    return (x - m) / torch.sqrt(v + eps)
def _scatter_add(tgt, idx, src, axis=0):
    return tgt.clone().index_add_(axis, idx, src)
def _segment_sum(src, seg, n):
    out = torch.zeros((n,) + src.shape[1:], dtype=src.dtype)
    return out.index_add_(0, seg, src)
def _pad(x, pw):
    flat = tuple(v for pair in reversed(pw) for v in pair)
    return torch.nn.functional.pad(x, flat)

kernel_name = 'recurrent_scan__ssm_conv_s4__dense_activation_squared_relu__prompt'

def setup_inputs():

    _w = (lambda a: (lambda t: t.to(torch.bfloat16) if t.is_floating_point() else t)(torch.as_tensor(a)))
    def _A_setup():
        B, L, D, N = 1, 2048, 512, 128
        A_re = -(lambda _x: torch.exp(torch.as_tensor(_x)))((lambda *s: torch.randn(*s, dtype=torch.bfloat16) * 3.2)(D, N))
        A_im = torch.pi * (lambda *s: torch.randn(*s, dtype=torch.bfloat16) * 0.05)(D, N)
        B_re = (lambda *s: torch.randn(*s, dtype=torch.bfloat16) * 0.2)(D, N)
        B_im = (lambda *s: torch.randn(*s, dtype=torch.bfloat16) * 0.1)(D, N)
        C_re = (lambda *s: torch.randn(*s, dtype=torch.bfloat16) * 0.2)(D, N)
        C_im = (lambda *s: torch.randn(*s, dtype=torch.bfloat16) * 0.2)(D, N)
        log_dt = (lambda *s: torch.randn(*s, dtype=torch.bfloat16) * 0.05)(D) * 0.5 - 4.0
        Dskip = (lambda *s: torch.randn(*s, dtype=torch.bfloat16) * 0.05)(D)
        return {
            "u": _w((lambda *s: torch.randn(*s, dtype=torch.bfloat16) * 0.05)(B, L, D)),
            "A_re": _w(A_re),
            "A_im": _w(A_im),
            "B_re": _w(B_re),
            "B_im": _w(B_im),
            "C_re": _w(C_re),
            "C_im": _w(C_im),
            "log_dt": _w(log_dt),
            "Dskip": _w(Dskip),
        }
    _A_in = _A_setup()

    def _B_setup():
        B, S, D, F = 1, 2048, 512, 1376
        return {
            "x": _w((lambda *s: torch.randn(*s, dtype=torch.bfloat16) * 0.05)(B, S, D)),
            "w1": _w((lambda *s: torch.randn(*s, dtype=torch.bfloat16) * 0.05)(D, F)),
            "b1": _w((lambda *s: torch.randn(*s, dtype=torch.bfloat16) * 0.4)(F)),
            "w2": _w((lambda *s: torch.randn(*s, dtype=torch.bfloat16) * 0.05)(F, D)),
            "b2": _w((lambda *s: torch.randn(*s, dtype=torch.bfloat16) * 1.6)(D)),
        }
    _B_in = _B_setup()

    return {
        "A_u": _A_in["u"],
        "A_A_re": _A_in["A_re"],
        "A_A_im": _A_in["A_im"],
        "A_B_re": _A_in["B_re"],
        "A_B_im": _A_in["B_im"],
        "A_C_re": _A_in["C_re"],
        "A_C_im": _A_in["C_im"],
        "A_log_dt": _A_in["log_dt"],
        "A_Dskip": _A_in["Dskip"],
        "B_x": _B_in["x"],
        "B_w1": _B_in["w1"],
        "B_b1": _B_in["b1"],
        "B_w2": _B_in["w2"],
        "B_b2": _B_in["b2"],
    }

def reference(A_u, A_A_re, A_A_im, A_B_re, A_B_im, A_C_re, A_C_im, A_log_dt, A_Dskip, B_x, B_w1, B_b1, B_w2, B_b2):
    def _A_ref(u, A_re, A_im, B_re, B_im, C_re, C_im, log_dt, Dskip):
        Bsz, L, D = u.shape
        dt = torch.exp(log_dt)[:, None]
        A = A_re + 1j * A_im
        Bc = B_re + 1j * B_im
        Cc = C_re + 1j * C_im
        logdA = dt * A
        dB = dt * Bc
        l = (lambda x, dt: x.to(dt))(torch.arange(L), A_re.dtype)
        P = torch.exp(logdA[:, :, None] * l[None, None, :])
        K = torch.einsum("dn,dnl,dn->dl", Cc, P, dB).real
        L2 = 2 * L
        Kp = _pad(K, ((0, 0), (0, L)))
        up = (lambda x, *d: x.permute(*d))(u, 0, 2, 1)
        up = _pad(up, ((0, 0), (0, 0), (0, L)))
        Kf = (lambda x, axes=(-2,-1): torch.fft.rfft2(x.float(), dim=axes))(Kp[:, None, :], axes=(-2, -1))
        Uf = (lambda x, axes=(-2,-1): torch.fft.rfft2(x.float(), dim=axes))(up[:, :, None, :], axes=(-2, -1))
        Yf = Uf * Kf[None, :, :, :]
        y = (lambda x, s, axes=(-2,-1): torch.fft.irfft2(x, s=s, dim=axes).to(torch.bfloat16))(Yf, (1, L2), axes=(-2, -1))[:, :, 0, :L]
        y = (lambda x, *d: x.permute(*d))(y, 0, 2, 1) + u * Dskip[None, None, :]
        return y

    def _B_ref(x, w1, b1, w2, b2):
        h = torch.einsum("bsd,df->bsf", x, w1) + b1
        zero = torch.zeros_like(h)
        r = torch.where(h > zero, h, zero)
        h = r * r
        out = torch.einsum("bsf,fd->bsd", h, w2) + b2
        return out

    x = A_u
    xn = _layernorm(x, axis=-1)
    s = _A_ref(xn, A_A_re, A_A_im, A_B_re, A_B_im, A_C_re, A_C_im, A_log_dt, A_Dskip)
    g = _silu(_B_ref(xn, B_w1, B_b1, B_w2, B_b2))
    return x + s * g
```

```python
import re, copy

_REG = re.compile(r'(?<![\w.])([vas])(\d+)(?![\w\[])|(?<![\w.])([vas])\[(\d+):(\d+)\]|(?<![\w.])(vcc|exec|m0|scc)(?![\w])')

def regs_of(txt):
    out = set()
    for m in _REG.finditer(txt):
        if m.group(1):
            out.add((m.group(1), int(m.group(2))))
        elif m.group(3):
            for i in range(int(m.group(4)), int(m.group(5)) + 1):
                out.add((m.group(3), i))
        else:
            out.add((m.group(6), 0))
    return out

def split_ops(s):
    ops, depth, cur = [], 0, ''
    for ch in s:
        if ch in '[(': depth += 1
        if ch in '])': depth -= 1
        if ch == ',' and depth == 0:
            ops.append(cur.strip()); cur = ''
        else:
            cur += ch
    if cur.strip(): ops.append(cur.strip())
    return ops

TRANS = ('v_exp_f32', 'v_log_f32', 'v_rcp_f32', 'v_rsq_f32', 'v_sqrt_f32', 'v_sin_f32', 'v_cos_f32')
NODST_S = ('s_cmp', 's_cbranch', 's_branch', 's_waitcnt', 's_barrier', 's_nop', 's_sleep', 's_setprio', 's_endpgm', 's_bitcmp')

class Inst:
    def __init__(self, text, tag=None):
        self.text = text.strip(); self.tag = tag
        t = self.text.split(';')[0].strip()
        sp = t.split(None, 1)
        self.op = sp[0]
        rest = sp[1] if len(sp) > 1 else ''
        ops = split_ops(rest)
        self.ops = ops
        op = self.op
        self.defs, self.uses = set(), set()
        self.mfma = op.startswith('v_mfma')
        self.valu = op.startswith('v_') and not self.mfma
        self.trans = any(op.startswith(x) for x in TRANS)
        self.salu = op.startswith('s_') and not op.startswith(('s_load', 's_memtime', 's_memrealtime', 's_buffer_load'))
        self.smem = op.startswith(('s_load', 's_memtime', 's_memrealtime', 's_buffer_load'))
        self.ds = op.startswith('ds_')
        self.vmem = op.startswith(('buffer_', 'global_'))
        self.dpp = any(k in rest for k in ('row_shr', 'row_shl', 'row_bcast', 'quad_perm', 'row_ror', 'wave_', 'row_mirror', 'row_half_mirror', 'row_newbcast'))
        self.ldsdma = self.vmem and bool(re.search(r'\blds\b', rest))
        self.wide_store = False
        R = [regs_of(o) for o in ops]
        allr = set().union(*R) if R else set()
        self.srcA = self.srcB = self.srcC = set()
        if self.mfma:
            self.defs = R[0]; self.srcA, self.srcB, self.srcC = R[1], R[2], R[3]
            self.uses = R[1] | R[2] | R[3]
            self.passes = 8 if '32x32x16' in op else 4 if '16x16x32' in op else None
            assert self.passes
        elif self.valu:
            if op.startswith('v_permlane') or op.startswith('v_swap'):
                self.defs = R[0] | R[1]; self.uses = R[0] | R[1]
            else:
                self.defs = set(R[0]); self.uses = set().union(*R[1:]) if len(R) > 1 else set()
                if op.startswith(('v_fmac', 'v_dot2c', 'v_pk_fmac', 'v_writelane')) or self.dpp:
                    self.uses |= R[0]
                if op.startswith('v_cndmask') and len(ops) == 3: self.uses.add(('vcc', 0))
                if op.startswith('v_cmpx'): self.defs.add(('exec', 0))
                assert '_co_' not in op, 'carry ops unsupported in this helper'
            self.uses.add(('exec', 0))
        elif self.ds:
            if op.startswith(('ds_read', 'ds_bpermute', 'ds_permute', 'ds_swizzle')):
                self.defs = R[0]; self.uses = set().union(*R[1:])
                if 'd16' in op: self.uses |= R[0]
            else:
                self.uses = allr
        elif self.vmem:
            if op.startswith(('buffer_inv', 'buffer_wbl2')):
                pass
            elif '_load' in op and not self.ldsdma:
                self.defs = R[0]; self.uses = set().union(*R[1:])
                if 'd16' in op: self.uses |= R[0]
            else:
                self.uses = set(allr)
                if self.ldsdma: self.uses.add(('m0', 0))
                if '_store' in op and ('x4' in op or 'x3' in op):
                    self.wide_store = True
                    self.store_data = R[0] if op.startswith('buffer') else R[1]
        elif self.smem:
            self.defs = R[0]; self.uses = set().union(*R[1:]) if len(R) > 1 else set()
        elif self.salu:
            if op.startswith(NODST_S):
                self.uses = allr
            else:
                self.defs = set(R[0]); self.uses = set().union(*R[1:]) if len(R) > 1 else set()
                if 'saveexec' in op: self.defs.add(('exec', 0)); self.uses.add(('exec', 0))
        else:
            raise ValueError('unknown instruction ' + text)
        self.states = 1
        if op == 's_nop': self.states = int(ops[0], 0) + 1

def is_sgprish(r): return r[0] in ('s', 'vcc')
def is_vec(r): return r[0] in ('v', 'a')

def need_states(p, c):
    n = 0
    if p.valu:
        sd = {r for r in p.defs if is_sgprish(r)}
        vd = {r for r in p.defs if is_vec(r)}
        if sd & c.uses:
            if c.vmem: n = max(n, 5)
            if c.valu: n = max(n, 4 if c.op.startswith(('v_readlane', 'v_writelane')) else 2)
            if c.mfma: n = max(n, 2)
        if vd & c.uses:
            if c.dpp: n = max(n, 2)
            if c.op.startswith(('v_readlane', 'v_readfirstlane')): n = max(n, 1)
            if c.op.startswith('v_permlane'): n = max(n, 2)
            if c.mfma: n = max(n, 2)
            if p.trans and (c.valu or c.mfma) and not c.trans: n = max(n, 1)
            if p.trans and c.trans: n = max(n, 1)
        if ('exec', 0) in p.defs:
            if c.dpp: n = max(n, 5)
            if c.mfma or c.op.startswith(('v_readlane', 'v_readfirstlane', 'v_writelane', 'v_permlane')): n = max(n, 4)
    if p.op.startswith('v_dot') and (p.defs & (c.uses | c.defs)) and (c.valu or c.mfma or c.vmem or c.ds):
        same_c = c.op == p.op and not (p.defs & (regs_of(c.ops[1]) | regs_of(c.ops[2])))
        if not same_c: n = max(n, 3)
    if p.salu and ('m0', 0) in p.defs and (c.ldsdma or 'addtid' in c.op): n = max(n, 1)
    if p.wide_store and (p.store_data & c.defs): n = max(n, 2 if c.valu else 1)
    if p.mfma:
        big = {4: 8, 8: 12}[p.passes]
        if c.mfma:
            if p.defs & (c.srcA | c.srcB): n = max(n, big)
            if p.defs & c.srcC and not (p.defs == c.srcC and p.passes == c.passes): n = max(n, {4: 6, 8: 10}[p.passes])
            if p.defs & c.defs and not (p.defs & c.srcC): n = max(n, big)
        elif (c.valu or c.vmem or c.ds) and (p.defs & (c.uses | c.defs)): n = max(n, big)
        if c.valu and (p.srcC & c.defs): n = max(n, {4: 3, 8: 7}[p.passes])
    return n

class State:
    def __init__(self):
        self.vm = []
        self.lg = []
        self.hist = []

class Asm:
    def __init__(self):
        self.lines = []
        self.st = State()
        self.saved = {}
        self.ninst = 0
        self.auto_nops = 0
        self.maxvm = 0
    def raw(self, s): self.lines.append(s)
    def comment(self, s): self.lines.append('  ; ' + s)
    def _push(self, ins):
        self.lines.append('  ' + ins.text)
        self.st.hist.append(ins)
        if len(self.st.hist) > 24: self.st.hist.pop(0)
        self.ninst += 1
    def _wait(self, vm=None, lg=None):
        parts = []
        st = self.st
        if vm is not None and vm < len(st.vm):
            vm = min(vm, 63); parts.append(f'vmcnt({vm})'); st.vm = st.vm[len(st.vm) - vm:] if vm else []
        if lg is not None and lg < len(st.lg):
            if any(x[2] for x in st.lg): lg = 0
            lg = min(lg, 15); parts.append(f'lgkmcnt({lg})'); st.lg = st.lg[len(st.lg) - lg:] if lg else []
        if parts: self._push(Inst('s_waitcnt ' + ' '.join(parts)))
    def __call__(self, text, tag=None):
        for line in text.strip().split('\n'):
            line = line.strip()
            if not line or line.startswith(';'):
                continue
            self.emit(line, tag)
    def emit(self, text, tag=None):
        ins = Inst(text, tag)
        st = self.st
        touched = ins.uses | ins.defs
        vm = lg = None
        for i, (t, d) in enumerate(st.vm):
            if d & touched: vm = len(st.vm) - 1 - i
        for i, (t, d, s) in enumerate(st.lg):
            if d & touched: lg = len(st.lg) - 1 - i
        self._wait(vm, lg)
        dist, need = 0, 0
        for p in reversed(st.hist):
            alts = p if isinstance(p, tuple) else (p,)
            for q in alts:
                k = need_states(q, ins)
                if k > dist: need = max(need, k - dist)
            dist += min(q.states for q in alts)
            if dist >= 20: break
        while need > 0:
            k = min(need, 16); self._push(Inst(f's_nop {k - 1}')); need -= k; self.auto_nops += 1
        if ins.op == 's_waitcnt':
            m = re.search(r'vmcnt\((\d+)\)', text)
            if m: n = int(m.group(1)); st.vm = st.vm[max(0, len(st.vm) - n):] if n else []
            m = re.search(r'lgkmcnt\((\d+)\)', text)
            if m:
                n = int(m.group(1))
                if n == 0: st.lg = []
                elif not any(x[2] for x in st.lg): st.lg = st.lg[max(0, len(st.lg) - n):]
        self._push(ins)
        if ins.vmem:
            st.vm.append((tag, set() if tag == 'sink' else set(ins.defs)))
            assert len(st.vm) <= 63, 'vmcnt overflow at ' + text
            self.maxvm = max(self.maxvm, len(st.vm))
        if ins.ds: st.lg.append((tag, set(ins.defs), False))
        if ins.smem: st.lg.append((tag, set(ins.defs), True))
    def wait_vm(self, tag):
        idx = [i for i, (t, d) in enumerate(self.st.vm) if t == tag]
        if idx: self._wait(vm=len(self.st.vm) - 1 - idx[-1])
    def wait_lg(self, tag=None):
        if tag is None: self._wait(lg=0); return
        idx = [i for i, x in enumerate(self.st.lg) if x[0] == tag]
        if idx: self._wait(lg=len(self.st.lg) - 1 - idx[-1])
    def barrier(self):
        self._wait(lg=0)
        self.emit('s_barrier')
    def label(self, name): self.lines.append(name + ':')
    def save(self, key): self.saved[key] = copy.copy(self.st.__dict__); self.saved[key] = {k: list(v) for k, v in self.st.__dict__.items()}
    def restore(self, key):
        for k, v in self.saved[key].items(): setattr(self.st, k, list(v))
    def merge(self, key):
        o = self.saved[key]; st = self.st
        assert len(o['vm']) == len(st.vm) and len(o['lg']) == len(st.lg), (len(o['vm']), len(st.vm), len(o['lg']), len(st.lg))
        st.vm = [(a[0], a[1] | b[1]) for a, b in zip(st.vm, o['vm'])]
        st.lg = [(a[0], a[1] | b[1], a[2] or b[2]) for a, b in zip(st.lg, o['lg'])]
        h1, h2 = st.hist, o['hist']; n = min(len(h1), len(h2)); h = []
        for a, b in zip(h1[len(h1) - n:], h2[len(h2) - n:]):
            ta = a if isinstance(a, tuple) else (a,); tb = b if isinstance(b, tuple) else (b,)
            h.append(ta + tb)
        st.hist = h
    def text(self): return '\n'.join(self.lines) + '\n'
```

```python
import sys, struct
sys.path.insert(0, 'gen')
from asmlib import Asm

NAME = "recurrent_scan__ssm_conv_s4__dense_activation_squared_relu__prompt"
PROF = '--prof' in sys.argv
OUT = [a for a in sys.argv[1:] if not a.startswith('--')]
OUT = OUT[0] if OUT else f'cdna_kernels/{NAME}.s'

def fbits(x): return '0x%08x' % struct.unpack('<I', struct.pack('<f', x))[0]

XNF, UB, SB, HH = 0x000000, 0x200000, 0x400000, 0x600000
FL_LN, FL_H, FL_S, W0 = 0xC00000, 0xC20000, 0xC40000, 0xC60000
PROFB = 0xD00000
L_W1 = 0
L_TAB = 98304; TABC = 53 * 528
L_LNS = L_TAB + 2 * TABC
L_CT = L_LNS; CTC = 2080
L_KT = L_TAB; KTC = 4160
L_UT = L_KT + 4 * KTC; UTC = 4608
L_CX = L_UT + 2 * UTC
L_RED = 0
L_SST = 49152
LDS_BYTES = 163840
assert L_CX + 16384 <= L_LNS and L_LNS + 8 * 1040 <= LDS_BYTES

sB, sW, sXCD, sJ, sRT1, sCG, sBPP, sRT2, sCT2, sTAG = 's2', 's3', 's4', 's5', 's6', 's7', 's8', 's9', 's10', 's11'
X_SRD, WS_SRD, W1_SRD, W2_SRD, OUT_SRD, B1_SRD = 's[52:55]', 's[56:59]', 's[60:63]', 's[64:67]', 's[68:71]', 's[72:75]'
P = dict(x=16, are=18, aim=20, bre=22, bim=24, cre=26, cim=28, ldt=30, dsk=32, w1=36, b1=38, w2=40, b2=42, out=44, dbg=46, ws=48)
def ptr(n): return f's[{P[n]}:{P[n]+1}]'

a = Asm()
nprof = [0]
def stamp():
    if PROF:
        k = nprof[0]; nprof[0] += 1
        a(f's_memtime s[{80+2*k}:{81+2*k}]') if k < 10 else None
        a.wait_lg()

def srd(dst, p, nbytes):
    d = int(dst[2:dst.index(':')])
    a(f's_mov_b32 s{d}, s{P[p]}\ns_mov_b32 s{d+1}, s{P[p]+1}\ns_mov_b32 s{d+2}, {nbytes}\ns_mov_b32 s{d+3}, 0x00020000')

npoll = [0]
def poll(vaddr, vtmp):
    k = npoll[0]; npoll[0] += 1
    a('s_mov_b32 s12, 0')
    a.label(f'L_poll{k}')
    a(f'buffer_load_dword {vtmp}, {vaddr}, {WS_SRD}, 0 offen sc1')
    a('s_waitcnt vmcnt(0)')
    a(f'v_cmp_ne_u32 vcc, {sTAG}, {vtmp}')
    a(f's_cbranch_vccz L_polld{k}')
    a('s_add_u32 s12, s12, 1\ns_cmp_lt_u32 s12, 20000')
    a(f's_cbranch_scc1 L_poll{k}')
    a.label(f'L_polld{k}')

def publish(sflagoff, vtmp, vtmp2):
    a(f'v_mov_b32 {vtmp}, {sTAG}\nv_mov_b32 {vtmp2}, 0\ns_mov_b64 exec, 1')
    a(f'buffer_store_dword {vtmp}, {vtmp2}, {WS_SRD}, {sflagoff} offen sc1')
    a('s_mov_b64 exec, -1')

def vr(b, n): return f'v[{b}:{b+n-1}]'
def ar(b, n): return f'a[{b}:{b+n-1}]'

a('s_cmp_ge_u32 s2, 256\ns_cbranch_scc1 L_end')
a('s_load_dwordx16 s[16:31], s[0:1], 0\ns_load_dwordx16 s[32:47], s[0:1], 64\ns_load_dwordx2 s[48:49], s[0:1], 128')
vL = 'v1'
a(f'v_and_b32 {vL}, 63, v0\nv_lshrrev_b32 v2, 6, v0\nv_readfirstlane_b32 {sW}, v2')
a(f's_and_b32 {sXCD}, {sB}, 7\ns_lshr_b32 {sJ}, {sB}, 3')
a(f's_and_b32 s12, {sXCD}, 3\ns_lshl_b32 s12, s12, 2\ns_and_b32 s13, {sJ}, 3\ns_add_u32 {sRT1}, s12, s13')
a(f's_lshr_b32 s12, {sXCD}, 2\ns_lshl_b32 s12, s12, 3\ns_lshr_b32 {sCT2}, {sJ}, 2\ns_add_u32 {sCG}, s12, {sCT2}')
a(f's_lshl_b32 s12, {sXCD}, 5\ns_add_u32 {sBPP}, s12, {sJ}')
a(f's_lshl_b32 s12, {sXCD}, 2\ns_add_u32 {sRT2}, s12, s13')
v16 = 'v2'
a(f'v_lshlrev_b32 {v16}, 4, {vL}')
a(f's_lshr_b32 s12, {sW}, 1\ns_lshl_b32 s13, {sBPP}, 1\ns_add_u32 s14, s13, s12')
a(f's_and_b32 s12, {sW}, 1\ns_lshl_b32 s12, s12, 7\ns_lshl_b32 s13, s14, 8\ns_add_u32 s13, s13, s12')
a(f'v_lshl_add_u32 v3, {vL}, 1, s13')
a('s_lshl_b32 s13, s14, 1\nv_mov_b32 v4, s13')
a(f'v_mov_b32 v5, {W0}')
for t3 in range(3):
    a(f'v_add_u32 v9, {64*t3}, {vL}\nv_mul_u32_u24 v10, 5462, v9\nv_lshrrev_b32 v10, 16, v10')
    a(f'v_mul_u32_u24 v11, 12, v10\nv_sub_u32 v9, v9, v11\nv_lshlrev_b32 v9, 4, v9')
    a(f'v_mul_u32_u24 v10, 2752, v10\nv_add_u32 v{6+t3}, v10, v9')
a.wait_lg()
srd(WS_SRD, 'ws', 0x10000000); srd(X_SRD, 'x', 2048*512*2)
a(f'buffer_load_dword v12, v5, {WS_SRD}, 0 offen sc1')
a(f's_lshl_b32 s12, {sB}, 13\ns_lshl_b32 s13, {sW}, 11\ns_add_u32 s12, s12, s13')
a(f'buffer_load_dwordx4 v[32:35], {v16}, {X_SRD}, s12 offen')
a(f'buffer_load_dwordx4 v[36:39], {v16}, {X_SRD}, s12 offen offset:1024')
for i, n in enumerate(['are', 'aim', 'bre', 'bim', 'cre', 'cim']):
    a(f'global_load_ushort v{40+i}, v3, {ptr(n)}')
a(f'global_load_ushort v46, v4, {ptr("ldt")}\nglobal_load_ushort v47, v4, {ptr("dsk")}')
srd(W1_SRD, 'w1', 512*1376*2); srd(W2_SRD, 'w2', 1376*512*2); srd(OUT_SRD, 'out', 2048*512*2); srd(B1_SRD, 'b1', 1376*2)
a(f's_mul_i32 s76, {sW}, {128*2752}\ns_mul_i32 s12, {sCG}, 192\ns_add_u32 s76, s76, s12')
a(f's_mul_i32 s77, {sW}, {24*1024}')
def w1_dma(groups):
    for g in groups:
        for t3 in range(3):
            a(f's_mov_b32 m0, s77\ns_add_u32 s77, s77, 1024')
            a(f'buffer_load_dwordx4 v{6+t3}, {W1_SRD}, s76 offen lds', tag='w1')
        a(f's_add_u32 s76, s76, {16*2752}')
w1_dma(range(4))
stamp()

a(f's_lshr_b32 s12, {sW}, 1\ns_mul_i32 s78, s12, {CTC}\ns_add_u32 s78, s78, {L_CT}')
a(f's_and_b32 s12, {sW}, 1\ns_lshl_b32 s12, s12, 6\nv_add_u32 v13, s12, {vL}')
a(f'v_lshlrev_b32 v14, 2, v13\nv_add_u32 v233, s78, v14\nv_add_u32 v234, 2, v233\nv_subrev_u32 v232, 2, v233')
a(f'v_cmp_eq_u32 vcc, 0, v13\nv_mov_b32 v14, s78\nv_add_u32 v14, 2048, v14\nv_cndmask_b32 v232, v232, v14, vcc')
a(f'v_lshlrev_b32 v14, 1, v13\nv_cvt_f32_u32 v14, v14')
a(f's_sub_u32 s79, s78, {2*(0x4300-128)}')
for it in range(1, 8):
    a(f'v_add_f32 v15, {fbits(256.0*it-1)}, v14\nv_add_f32 v16, {fbits(256.0*it)}, v14\nv_add_f32 v17, {fbits(256.0*it+1)}, v14')
    a('v_cvt_pk_bf16_f32 v15, v15, v16\nv_cvt_pk_bf16_f32 v17, v17, v17')
    a('v_and_b32 v16, 0xffff, v15\nv_lshrrev_b32 v15, 16, v15\nv_lshrrev_b32 v17, 16, v17')
    a(f'v_lshl_add_u32 v{232+3*it}, v16, 1, s79\nv_lshl_add_u32 v{233+3*it}, v15, 1, s79\nv_lshl_add_u32 v{234+3*it}, v17, 1, s79')

a(f'v_readfirstlane_b32 {sTAG}, v12')
a(f's_mul_i32 {sTAG}, {sTAG}, 0x9E3779B1\ns_add_u32 {sTAG}, {sTAG}, 0x7F4A7C15')
a('s_mov_b32 s12, 0x3f803f80')
for k in range(4):
    for r, (sa, sq) in enumerate([(16, 18), (17, 19)]):
        x = f'v{32+4*r+k}'
        a(f'v_dot2_f32_bf16 v{sa}, {x}, s12, {"0" if k == 0 else f"v{sa}"}')
        a(f'v_dot2_f32_bf16 v{sq}, {x}, {x}, {"0" if k == 0 else f"v{sq}"}')
for mod in ['row_shr:1 row_mask:0xf bank_mask:0xf bound_ctrl:0', 'row_shr:2 row_mask:0xf bank_mask:0xf bound_ctrl:0',
            'row_shr:4 row_mask:0xf bank_mask:0xf bound_ctrl:0', 'row_shr:8 row_mask:0xf bank_mask:0xf bound_ctrl:0',
            'row_bcast:15 row_mask:0xa bank_mask:0xf', 'row_bcast:31 row_mask:0xc bank_mask:0xf']:
    for r in range(16, 20):
        a(f'v_add_f32_dpp v{r}, v{r}, v{r} {mod}')
for r in range(4): a(f'v_readlane_b32 s{12+r}, v{16+r}, 63')
for r in range(4): a(f'v_mov_b32 v{16+r}, s{12+r}')
a(f'v_mov_b32 v20, {fbits(1/512)}')
a('v_pk_mul_f32 v[16:17], v[16:17], v[20:21] op_sel_hi:[1,0]\nv_pk_mul_f32 v[18:19], v[18:19], v[20:21] op_sel_hi:[1,0]')
a('v_pk_fma_f32 v[18:19], v[16:17], v[16:17], v[18:19] neg_lo:[1,0,0] neg_hi:[1,0,0]')
a('v_max_f32 v18, 0, v18\nv_max_f32 v19, 0, v19')
def rnd2(lo, hi, t):
    a(f'v_cvt_pk_bf16_f32 {t}, {lo}, {hi}\nv_lshlrev_b32 {lo}, 16, {t}\nv_and_b32 {hi}, 0xffff0000, {t}')
rnd2('v16', 'v17', 'v20'); rnd2('v18', 'v19', 'v21')
a(f'v_add_f32 v18, {fbits(1e-5)}, v18\nv_add_f32 v19, {fbits(1e-5)}, v19')
rnd2('v18', 'v19', 'v21')
a('v_sqrt_f32 v18, v18\nv_sqrt_f32 v19, v19')
rnd2('v18', 'v19', 'v21')
a('v_rcp_f32 v18, v18\nv_rcp_f32 v19, v19')
a('v_pk_mul_f32 v[16:17], v[16:17], v[18:19] neg_lo:[1,0] neg_hi:[1,0]')
for r in range(2):
    sel = 'op_sel:[0,0,0] op_sel_hi:[1,0,0]' if r == 0 else 'op_sel:[0,1,1] op_sel_hi:[1,1,1]'
    for k in range(4):
        x = f'v{32+4*r+k}'; t = 22 + 2 * (k % 2)
        a(f'v_lshlrev_b32 v{t}, 16, {x}\nv_and_b32 v{t+1}, 0xffff0000, {x}')
        a(f'v_pk_fma_f32 v[{t}:{t+1}], v[{t}:{t+1}], v[18:19], v[16:17] {sel}')
        a(f'v_cvt_pk_bf16_f32 {x}, v{t}, v{t+1}')
a(f's_mul_i32 s12, {sW}, 2080\ns_add_u32 s12, s12, {L_LNS}\nv_add_u32 v16, s12, {v16}')
a('ds_write_b128 v16, v[32:35]\nds_write_b128 v16, v[36:39] offset:1040')
a(f'v_and_b32 v17, 7, v0\nv_lshrrev_b32 v18, 3, v0\nv_mul_u32_u24 v19, 1040, v17\nv_lshl_add_u32 v19, v18, 4, v19\nv_add_u32 v19, {L_LNS}, v19')
a('v_lshlrev_b32 v18, 9, v18\nv_lshl_add_u32 v18, v17, 4, v18')
a(f'v_bfe_u32 v20, v0, 2, 2\nv_sub_u32 v20, 3, v20\nv_mul_u32_u24 v20, 1040, v20')
a(f'v_and_b32 v21, 3, v0\nv_lshlrev_b32 v21, 3, v21\nv_and_b32 v22, 0xf0, v0\nv_lshl_add_u32 v21, v22, 1, v21\nv_add3_u32 v20, v20, v21, {L_LNS}'.replace(f'v_add3_u32 v20, v20, v21, {L_LNS}', f'v_add_u32 v20, v20, v21\nv_add_u32 v20, {L_LNS}, v20'))
a('v_lshlrev_b32 v21, 4, v0')
a.barrier()
a('ds_read_b128 v[32:35], v19\nds_read_b128 v[36:39], v19 offset:512')
a('ds_read_b64_tr_b16 v[48:49], v20 offset:4160\nds_read_b64_tr_b16 v[50:51], v20')
a('ds_read_b64_tr_b16 v[52:53], v20 offset:4672\nds_read_b64_tr_b16 v[54:55], v20 offset:512')
a(f's_lshr_b32 s12, {sB}, 2\ns_lshl_b32 s12, s12, 15\ns_and_b32 s13, {sB}, 3\ns_lshl_b32 s13, s13, 7\ns_add_u32 s12, s12, s13\ns_add_u32 s13, s12, 16384')
a(f'buffer_store_dwordx4 v[32:35], v18, {WS_SRD}, s12 offen sc1', tag='ln')
a(f'buffer_store_dwordx4 v[36:39], v18, {WS_SRD}, s13 offen sc1', tag='ln')
a(f's_lshl_b32 s12, {sB}, 13\ns_add_u32 s12, s12, {UB}\ns_add_u32 s13, s12, 4096')
a(f'buffer_store_dwordx4 v[48:51], v21, {WS_SRD}, s12 offen sc1', tag='ln')
a(f'buffer_store_dwordx4 v[52:55], v21, {WS_SRD}, s13 offen sc1', tag='ln')
w1_dma(range(4, 8))
stamp()

def cmul(d, x, y):
    a(f'v_pk_mul_f32 v[{d}:{d+1}], v[{x}:{x+1}], v[{y}:{y+1}] op_sel:[0,0] op_sel_hi:[0,1]')
    a(f'v_pk_fma_f32 v[{d}:{d+1}], v[{x}:{x+1}], v[{y}:{y+1}], v[{d}:{d+1}] op_sel:[1,1,0] op_sel_hi:[1,0,1] neg_lo:[1,0,0]')
for i in range(7): a(f'v_lshlrev_b32 v{40+i}, 16, v{40+i}')
a('v_lshlrev_b32 v31, 16, v47')
a(f'v_mul_f32 v46, {fbits(1.4426950408889634)}, v46\nv_exp_f32 v46, v46')
a('v_cvt_pk_bf16_f32 v46, v46, v46\nv_lshlrev_b32 v46, 16, v46')
a('v_mul_f32 v40, v46, v40\nv_mul_f32 v41, v46, v41\nv_mul_f32 v42, v46, v42\nv_mul_f32 v43, v46, v43')
a(f'v_mul_f32 v40, {fbits(1.4426950408889634)}, v40\nv_mul_f32 v41, {fbits(0.15915494309189535)}, v41')
G0 = 56
cmul(G0, 44, 42)
def direct(d, l):
    a(f'v_mul_f32 v22, {fbits(l)}, v41\nv_mul_f32 v23, {fbits(l)}, v40\nv_fract_f32 v22, v22\nv_exp_f32 v23, v23')
    a(f'v_cos_f32 v24, v22\nv_sin_f32 v25, v22\nv_mul_f32 v{d}, v23, v24\nv_mul_f32 v{d+1}, v23, v25')
E1, E8, E256, E512, E1024 = 58, 60, 62, 64, 66
direct(E1, 1.0); direct(E8, 8.0); direct(E256, 256.0)
a(f's_lshr_b32 s12, {sW}, 1\ns_mul_i32 s12, s12, {TABC}\ns_add_u32 s12, s12, {L_TAB}\nv_lshl_add_u32 v26, v13, 2, s12')
tmpc = [27, 28, 29, 30]; tci = [0]
def put(row, x, neg):
    t = tmpc[tci[0] % 4]; tci[0] += 1
    a(f'v_cvt_pk_bf16_f32 v{t}, v{x}, {"-" if neg else ""}v{x+1}')
    a(f'ds_write_b32 v26, v{t} offset:{row*528}')
a('v_mov_b32 v27, 0x00003f80\nds_write_b32 v26, v27')
Pa = [68, 70, 72, 74]; Pb = [76, 78, 80, 82]; E32 = 84
put(1, E8, False)
cmul(Pa[2], E8, E8); put(2, Pa[2], False)
cmul(Pa[3], Pa[2], E8); put(3, Pa[3], False)
cmul(E32, Pa[2], Pa[2]); put(4, E32, False)
cur = [E32, None, None, None]
cmul(Pb[1], E8, E32); put(5, Pb[1], False)
cmul(Pb[2], Pa[2], E32); put(6, Pb[2], False)
cmul(Pb[3], Pa[3], E32); put(7, Pb[3], False)
cur = [E32, Pb[1], Pb[2], Pb[3]]
for q in range(2, 8):
    dst = Pa if q % 2 == 0 else Pb
    for i in range(4):
        cmul(dst[i], cur[i], E32); put(4*q+i, dst[i], False)
    cur = list(dst)
    if q == 3:
        a.wait_vm('ln')
        a(f's_lshl_b32 s12, {sB}, 2\ns_add_u32 s12, s12, {sW}\ns_lshl_b32 s12, s12, 7\ns_add_u32 s12, s12, {FL_LN}')
        publish('s12', 'v22', 'v23')
G = {0: G0}
nxt = [86]
def alloc2():
    r = nxt[0]; nxt[0] += 2; return r
put(32, G0, True)
for h in range(1, 8):
    G[h] = alloc2(); cmul(G[h], G[h-1], E1); put(32+h, G[h], True)
cmul(E512, E256, E256); cmul(E1024, E512, E512)
for i, h in enumerate([0, 2, 4, 6]):
    G[256+h] = alloc2(); cmul(G[256+h], G[h], E256); put(40+i, G[256+h], True)
for i, (h, src) in enumerate([(512, 0), (516, 4), (768, 256), (772, 260)]):
    G[h] = alloc2(); cmul(G[h], G[src], E512); put(44+i, G[h], True)
for i, (h, src) in enumerate([(1024, 0), (1280, 256), (1536, 512), (1792, 768), (2048, 1024)]):
    G[h] = alloc2(); cmul(G[h], G[src], E1024); put(48+i, G[h], True)
assert nxt[0] <= 160
a(f's_lshr_b32 s12, {sW}, 1\ns_mul_i32 s12, s12, {TABC}\ns_add_u32 s12, s12, {L_TAB}')
a(f'v_and_b32 v22, 15, {vL}\nv_lshrrev_b32 v23, 4, {vL}\nv_mul_u32_u24 v24, 528, v22\nv_lshl_add_u32 v24, v23, 4, v24\nv_add_u32 v24, s12, v24')
a(f's_and_b32 s13, {sW}, 1\ns_mul_i32 s13, s13, {16*528}\nv_add_u32 v25, s13, v24')
stamp()
a.barrier()
for kk in range(8):
    a(f'ds_read_b128 {vr(32+12*kk, 4)}, v24 offset:{32*528+64*kk}')
    a(f'ds_read_b128 {vr(36+12*kk, 4)}, v24 offset:{48*528+64*kk}')
    a(f'ds_read_b128 {vr(40+12*kk, 4)}, v25 offset:{64*kk}')
    if kk >= 3:
        k2 = kk - 3
        a(f'v_mfma_f32_16x16x32_bf16 v[160:163], {vr(32+12*k2, 4)}, {vr(40+12*k2, 4)}, {"0" if k2 == 0 else "v[160:163]"}')
        a(f'v_mfma_f32_16x16x32_bf16 v[164:167], {vr(36+12*k2, 4)}, {vr(40+12*k2, 4)}, {"0" if k2 == 0 else "v[164:167]"}')
for k2 in range(5, 8):
    a(f'v_mfma_f32_16x16x32_bf16 v[160:163], {vr(32+12*k2, 4)}, {vr(40+12*k2, 4)}, v[160:163]')
    a(f'v_mfma_f32_16x16x32_bf16 v[164:167], {vr(36+12*k2, 4)}, {vr(40+12*k2, 4)}, v[164:167]')
a(f's_and_b32 s13, {sW}, 1\ns_lshl_b32 s13, s13, 4\nv_add_u32 v22, s13, v22')
a('v_lshlrev_b32 v24, 3, v22\nv_lshl_add_u32 v24, v23, 2, v24')
a('v_lshlrev_b32 v25, 2, v22\nv_add_u32 v25, 0x100, v25\nv_cmp_eq_u32 vcc, 2, v23\nv_cndmask_b32 v24, v24, v25, vcc')
a('v_lshlrev_b32 v25, 1, v22\nv_add_u32 v25, 0x180, v25\nv_cmp_eq_u32 vcc, 3, v23\nv_cndmask_b32 v24, v24, v25, vcc')
a('v_mov_b32 v25, 2\nv_mov_b32 v27, 64\nv_cndmask_b32 v25, v25, v27, vcc\nv_add_u32 v25, v24, v25')
a('v_lshl_add_u32 v24, v24, 1, s78\nv_lshl_add_u32 v25, v25, 1, s78')
a('v_lshl_add_u32 v27, v23, 7, v22\nv_add_u32 v27, 0x200, v27\nv_lshl_add_u32 v27, v27, 1, s78')
a('v_or_b32 v28, v22, v23\nv_cmp_eq_u32 vcc, 0, v28\nv_cndmask_b32 v28, 0, v31, vcc')
a('v_add_f32 v160, v160, v28')
a('v_cvt_pk_bf16_f32 v160, v160, v161\nv_cvt_pk_bf16_f32 v161, v162, v163\nv_cvt_pk_bf16_f32 v162, v164, v165\nv_cvt_pk_bf16_f32 v163, v166, v167')
a('ds_write_b32 v24, v160\nds_write_b32 v25, v161')
a('ds_write_b16 v27, v162\nds_write_b16_d16_hi v27, v162 offset:64\nds_write_b16 v27, v163 offset:128\nds_write_b16_d16_hi v27, v163 offset:192')
a('v_mov_b32 v28, 0\nv_mov_b32 v29, s78\nds_write_b32 v29, v28 offset:2048')
a.barrier()
a(f's_lshr_b32 s12, {sW}, 1\ns_mul_i32 s12, s12, {2*KTC}\ns_add_u32 s12, s12, {L_KT}\nv_lshl_add_u32 v24, v13, 2, s12')
for it in range(8):
    for e in range(3): a(f'ds_read_u16 v{32+3*it+e}, v{232+3*it+e}')
for it in range(8):
    b = 32 + 3*it
    a(f'v_lshl_or_b32 v{b}, v{b+1}, 16, v{b}\nv_lshl_or_b32 v{b+1}, v{b+2}, 16, v{b+1}')
    a(f'ds_write_b32 v24, v{b} offset:{28+512*it}\nds_write_b32 v24, v{b+1} offset:{KTC+28+512*it}')
a('v_mov_b32 v28, 0\nv_mov_b32 v29, 0\nv_mov_b32 v30, 0\nv_mov_b32 v31, 0')
a('v_cmp_gt_u32 vcc, 7, v13\ns_and_saveexec_b64 s[14:15], vcc')
a(f'ds_write_b32 v24, v28\nds_write_b32 v24, v28 offset:{KTC}')
a('s_mov_b64 exec, s[14:15]')
a(f'v_lshrrev_b32 v25, 5, {vL}\nv_mul_u32_u24 v25, {UTC}, v25\nv_and_b32 v27, 31, {vL}\nv_lshl_add_u32 v25, v27, 4, v25')
a(f'ds_write_b128 v25, v[28:31] offset:{L_UT+4096-65536}'.replace(f'offset:{L_UT+4096-65536}', 'offset:0').replace('v25,', 'v27,').replace('ds_write_b128 v27', f'v_add_u32 v27, {L_UT+4096}, v25\nds_write_b128 v27'))
stamp()

a(f'v_lshrrev_b32 v22, 5, {vL}\nv_lshlrev_b32 v22, 3, v22')
a(f's_mul_i32 s12, {sCG}, 192')
for ct in range(3):
    for q in range(4):
        a(f'buffer_load_dwordx2 {vr(208+8*ct+2*q, 2)}, v22, {B1_SRD}, s12 offen offset:{64*ct+16*q}')
a(f's_lshl_b32 s12, {sRT1}, 6\ns_lshl_b32 s13, {sW}, 4\ns_add_u32 s12, s12, s13\ns_lshl_b32 s12, s12, 7\ns_add_u32 s12, s12, {FL_LN}')
a(f'v_and_b32 v23, 15, {vL}\nv_lshl_add_u32 v23, v23, 7, s12')
poll('v23', 'v24')
a(f's_lshl_b32 s12, {sRT1}, 2\ns_add_u32 s12, s12, {sW}\ns_lshl_b32 s12, s12, 15')
for ks in range(32):
    a(f'buffer_load_dwordx4 {vr(32+4*ks, 4)}, {v16}, {WS_SRD}, s12 offen offset:{(ks % 4)*1024} sc1')
    if ks % 4 == 3: a('s_add_u32 s12, s12, 4096')
for i in range(24):
    a(f'v_lshlrev_b32 v{160+2*i}, 16, v{208+i}\nv_and_b32 v{161+2*i}, 0xffff0000, v{208+i}')
a(f'v_lshrrev_b32 v22, 5, {vL}\nv_bfe_u32 v23, {vL}, 2, 2\nv_lshl_add_u32 v22, v22, 3, v23\nv_mul_u32_u24 v22, 192, v22')
a(f'v_bfe_u32 v23, {vL}, 4, 1\nv_lshl_add_u32 v22, v23, 5, v22\nv_and_b32 v23, 3, {vL}\nv_lshl_add_u32 v22, v23, 3, v22\nv_add_u32 v23, 49152, v22')
stamp()
a.barrier()
def wread(ks):
    base = 'v22' if ks < 16 else 'v23'; o = (ks % 16) * 3072; rb = 208 + 12 * (ks % 2)
    for ct in range(3):
        for q in range(2):
            a(f'ds_read_b64_tr_b16 {vr(rb+4*ct+2*q, 2)}, {base} offset:{o+768*q+64*ct}')
wread(0)
for ks in range(32):
    if ks + 1 < 32: wread(ks + 1)
    rb = 208 + 12 * (ks % 2)
    for ct in range(3):
        a(f'v_mfma_f32_32x32x16_bf16 {vr(160+16*ct, 16)}, {vr(rb+4*ct, 4)}, {vr(32+4*ks, 4)}, {vr(160+16*ct, 16)}')
stamp()
a(f's_lshl_b32 s12, {sRT1}, 2\ns_add_u32 s12, s12, {sW}\ns_mul_i32 s12, s12, 86\ns_mul_i32 s13, {sCG}, 6\ns_add_u32 s12, s12, s13\ns_lshl_b32 s12, s12, 10\ns_add_u32 s12, s12, {HH}')
for ct in range(3):
    a(f's_mul_i32 s13, {sCG}, 3\ns_add_u32 s13, s13, {ct}\ns_cmp_lt_u32 s13, 43\ns_cselect_b32 s14, s12, 0x70000000')
    b = 160 + 16*ct
    for i in range(16): a(f'v_max_f32 v{b+i}, 0, v{b+i}')
    for i in range(8): a(f'v_pk_mul_f32 {vr(b+2*i, 2)}, {vr(b+2*i, 2)}, {vr(b+2*i, 2)}')
    for i in range(8): a(f'v_cvt_pk_bf16_f32 v{b+i}, v{b+2*i}, v{b+2*i+1}')
    a(f'buffer_store_dwordx4 {vr(b, 4)}, {v16}, {WS_SRD}, s14 offen sc1', tag='h')
    a(f'buffer_store_dwordx4 {vr(b+4, 4)}, {v16}, {WS_SRD}, s14 offen offset:1024 sc1', tag='h')
    a('s_add_u32 s12, s12, 2048')
a(f's_lshr_b32 s12, {sBPP}, 5\ns_and_b32 s12, s12, 3\ns_lshl_b32 s13, {sW}, 8\ns_add_u32 s12, s12, s13\ns_lshl_b32 s12, s12, 7\ns_add_u32 s12, s12, {FL_LN}')
a(f'v_lshl_add_u32 v22, {vL}, 9, s12')
poll('v22', 'v23')
a(f's_lshl_b32 s12, {sRT1}, 4\ns_add_u32 s12, s12, {sCG}\ns_lshl_b32 s12, s12, 2\ns_add_u32 s12, s12, {sW}\ns_lshl_b32 s12, s12, 7\ns_add_u32 s12, s12, {FL_H}')
publish('s12', 'v22', 'v23')
a(f's_lshl_b32 s12, {sW}, 19\ns_lshl_b32 s13, {sBPP}, 5\ns_add_u32 s12, s12, s13\ns_add_u32 s12, s12, {UB}\nv_lshlrev_b32 v22, 13, {vL}')
a(f'buffer_load_dwordx4 v[32:35], v22, {WS_SRD}, s12 offen sc1\nbuffer_load_dwordx4 v[36:39], v22, {WS_SRD}, s12 offen offset:16 sc1')
a(f's_lshl_b32 s12, {sW}, 10\ns_sub_u32 s12, {L_UT+255*16}, s12\nv_sub_u32 v23, s12, {v16}')
a(f'ds_write_b128 v23, v[32:35]\nds_write_b128 v23, v[36:39] offset:{UTC}')
a.barrier()
stamp()

a(f'v_lshrrev_b32 v22, 3, {vL}\nv_lshlrev_b32 v22, 10, v22\nv_and_b32 v23, 7, {vL}\nv_bfe_u32 v24, {vL}, 4, 1\nv_lshlrev_b32 v24, 2, v24\nv_xor_b32 v23, v23, v24\nv_lshl_add_u32 v6, v23, 4, v22')
a(f's_mul_i32 s76, {sW}, {352*1024}\ns_lshl_b32 s12, {sCT2}, 7\ns_add_u32 s76, s76, s12\ns_mul_i32 s79, {sW}, 24576')
def w2_dma(i0, i1, tag):
    a('s_mov_b32 s77, s79')
    for i in range(i0, i1):
        a('s_mov_b32 m0, s77\ns_add_u32 s77, s77, 1024')
        a(f'buffer_load_dwordx4 v6, {W2_SRD}, s76 offen lds', tag=tag)
        a('s_add_u32 s76, s76, 8192')
w2_dma(0, 24, 'w2a')
a(f'v_lshrrev_b32 v22, 5, {vL}\nv_bfe_u32 v23, {vL}, 2, 2\nv_lshl_add_u32 v22, v22, 2, v23\nv_lshlrev_b32 v22, 7, v22')
a(f'v_bfe_u32 v23, {vL}, 4, 1\nv_lshlrev_b32 v23, 1, v23\nv_bfe_u32 v24, {vL}, 1, 1\nv_add_u32 v23, v23, v24\nv_bfe_u32 v24, {vL}, 3, 1\nv_lshlrev_b32 v24, 2, v24\nv_xor_b32 v23, v23, v24')
a(f's_and_b32 s12, {sW}, 1\ns_lshl_b32 s12, s12, 2\nv_xor_b32 v23, s12, v23\nv_lshl_add_u32 v22, v23, 4, v22\nv_and_b32 v23, 1, {vL}\nv_lshl_add_u32 v22, v23, 3, v22')
a('v_add_u32 v7, s79, v22\nv_xor_b32 v8, 64, v7')
def w2_read(kk, kloc):
    for sl, base in enumerate(['v7', 'v8']):
        for q in range(2):
            a(f'ds_read_b64_tr_b16 {ar(8*kk+4*sl+2*q, 2)}, {base} offset:{kloc*2048+q*1024}')
a(f's_lshr_b32 s12, {sW}, 1\ns_mul_i32 s12, s12, {2*KTC}\ns_and_b32 s13, {sW}, 1\ns_lshl_b32 s13, s13, 8\ns_add_u32 s12, s12, s13\ns_add_u32 s12, s12, {L_KT}')
a(f'v_and_b32 v22, 1, {vL}\nv_mul_u32_u24 v22, {KTC}, v22\nv_bfe_u32 v23, {vL}, 1, 3\nv_lshl_add_u32 v22, v23, 2, v22\nv_lshrrev_b32 v23, 4, {vL}\nv_lshl_add_u32 v22, v23, 4, v22')
a('v_add_u32 v9, s12, v22\nv_add_u32 v10, 0x400, v9\nv_add_u32 v11, 0x800, v9\nv_add_u32 v12, 0xc00, v9')
a(f's_lshr_b32 s12, {sW}, 1\ns_mul_i32 s12, s12, {UTC}\ns_add_u32 s12, s12, s13\ns_add_u32 s12, s12, {L_UT+480}')
a(f'v_and_b32 v22, 15, {vL}\nv_lshlrev_b32 v22, 5, v22\nv_lshlrev_b32 v23, 4, v23\nv_sub_u32 v22, v23, v22\nv_add_u32 v13, s12, v22')
def conv_reads(rr):
    kb = 32 + 64 * (rr % 2); ub = kb + 32
    for q in range(8):
        base = f'v{9 + q // 2}'; o = 16*rr + 128*(q % 2)
        a(f'ds_read2_b32 {vr(kb+4*q, 2)}, {base} offset0:{o} offset1:{o+1}')
        a(f'ds_read2_b32 {vr(kb+4*q+2, 2)}, {base} offset0:{o+2} offset1:{o+3}')
        a(f'ds_read_b128 {vr(ub+4*q, 4)}, v13 offset:{3584-512*q+64*rr}')
conv_reads(0)
for rr in range(4):
    if rr + 1 < 4: conv_reads(rr + 1)
    kb = 32 + 64 * (rr % 2); ub = kb + 32
    for q in range(8):
        for ct in range(q, 8):
            c = "0" if (rr == 0 and q == 0) else vr(160+4*ct, 4)
            a(f'v_mfma_f32_16x16x32_bf16 {vr(160+4*ct, 4)}, {vr(kb+4*q, 4)}, {vr(ub+4*(ct-q), 4)}, {c}')
    if rr == 1:
        a.wait_vm('w2a')
        for kk in range(12): w2_read(kk, kk)
        a.wait_lg()
        w2_dma(24, 44, 'w2b')
a(f's_lshl_b32 s12, {sW}, 12\ns_add_u32 s12, s12, {L_CX}\nv_add_u32 v22, s12, {v16}\nv_xor_b32 v23, 0x1000, v22'.replace('v_xor_b32 v23, 0x1000, v22', f's_xor_b32 s13, {sW}, 1\ns_lshl_b32 s13, s13, 12\ns_add_u32 s13, s13, {L_CX}\nv_add_u32 v23, s13, {v16}'))
a(f'v_and_b32 v24, 15, {vL}\nv_lshlrev_b32 v24, 14, v24\nv_lshrrev_b32 v25, 5, {vL}\nv_lshl_add_u32 v24, v25, 13, v24\nv_bfe_u32 v25, {vL}, 4, 1\nv_lshl_add_u32 v24, v25, 3, v24')
a(f's_lshr_b32 s12, {sW}, 1\ns_lshl_b32 s13, {sBPP}, 1\ns_add_u32 s12, s12, s13\ns_lshl_b32 s12, s12, 4\ns_and_b32 s13, {sW}, 1\ns_lshl_b32 s13, s13, 20\ns_add_u32 s12, s12, s13\ns_add_u32 s14, s12, {SB}')
a(f's_and_b32 s12, {sW}, 1\ns_cmp_eq_u32 s12, 0\ns_cbranch_scc0 L_cx1')
a.save('cx')
def cx(keep, send):
    for i in range(4): a(f'ds_write_b128 v22, {vr(send+4*i, 4)} offset:{1024*i}')
    a.barrier()
    for i in range(4): a(f'ds_read_b128 {vr(32+4*i, 4)}, v23 offset:{1024*i}')
    for i in range(8): a(f'v_pk_add_f32 {vr(32+2*i, 2)}, {vr(32+2*i, 2)}, {vr(keep+2*i, 2)}')
cx(160, 176)
a('s_branch L_cx2')
a.save('cxa'); a.restore('cx')
a.label('L_cx1')
cx(176, 160)
a.label('L_cx2'); a.merge('cxa')
for i in range(8): a(f'v_cvt_pk_bf16_f32 v{48+i}, v{32+2*i}, v{33+2*i}')
for i in range(4):
    a(f'buffer_store_dwordx2 {vr(48+2*i, 2)}, v24, {WS_SRD}, s14 offen sc1', tag='s')
    a('s_add_u32 s14, s14, 0x40000')
for kk in range(12, 22):
    if kk == 12: a.wait_vm('w2b')
    w2_read(kk, kk - 12)
stamp()

a(f's_lshr_b32 s12, {sRT2}, 1\ns_lshl_b32 s12, s12, 6\ns_and_b32 s13, {sRT2}, 1\ns_lshl_b32 s13, s13, 1\ns_add_u32 s12, s12, s13\ns_lshl_b32 s12, s12, 7\ns_add_u32 s12, s12, {FL_H}')
a(f'v_lshrrev_b32 v22, 1, {vL}\nv_min_u32 v22, 14, v22\nv_lshlrev_b32 v22, 2, v22\nv_and_b32 v23, 1, {vL}\nv_add_u32 v22, v22, v23\nv_lshl_add_u32 v22, v22, 7, s12')
poll('v22', 'v23')
a(f's_lshl_b32 s12, {sBPP}, 2\ns_add_u32 s12, s12, {sW}\ns_lshl_b32 s12, s12, 7\ns_add_u32 s12, s12, {FL_S}')
publish('s12', 'v22', 'v23')
a(f's_lshl_b32 s12, {sRT2}, 1\ns_lshr_b32 s13, {sW}, 1\ns_add_u32 s14, s12, s13\ns_xor_b32 s15, s14, 1')
a(f's_mul_i32 s14, s14, {86*1024}\ns_mul_i32 s15, s15, {86*1024}\ns_add_u32 s14, s14, {HH}\ns_add_u32 s15, s15, {HH}')
a(f's_mul_i32 s76, {sW}, 22')
RING = 16
def hload(kk):
    rb = 32 + 8 * (kk % RING)
    a(f's_add_u32 s12, s76, {kk}\ns_min_u32 s12, s12, 85\ns_lshl_b32 s12, s12, 10\ns_add_u32 s13, s12, s15\ns_add_u32 s12, s12, s14')
    a(f'buffer_load_dwordx4 {vr(rb, 4)}, {v16}, {WS_SRD}, s12 offen sc1')
    a(f'buffer_load_dwordx4 {vr(rb+4, 4)}, {v16}, {WS_SRD}, s13 offen sc1')
for kk in range(RING): hload(kk)
for kk in range(22):
    rb = 32 + 8 * (kk % RING)
    for s in range(4):
        c = "0" if kk == 0 else vr(160+16*s, 16)
        a(f'v_mfma_f32_32x32x16_bf16 {vr(160+16*s, 16)}, {ar(8*kk+4*(s & 1), 4)}, {vr(rb+4*(s >> 1), 4)}, {c}')
    if kk + RING < 22: hload(kk + RING)
stamp()
a(f's_lshl_b32 s12, {sCT2}, 7\ns_lshr_b32 s13, {sRT2}, 4\ns_add_u32 s12, s12, s13\ns_lshl_b32 s12, s12, 7\ns_add_u32 s12, s12, {FL_S}\nv_lshl_add_u32 v22, {vL}, 8, s12')
poll('v22', 'v23')
a(f's_lshl_b32 s12, {sRT2}, 3\ns_add_u32 s12, s12, {sW}\ns_lshl_b32 s12, s12, 13\ns_lshl_b32 s13, {sCT2}, 10\ns_add_u32 s12, s12, s13\ns_add_u32 s12, s12, {SB}\ns_add_u32 s13, s12, 32768')
a(f'buffer_load_dwordx4 v[32:35], {v16}, {WS_SRD}, s12 offen sc1\nbuffer_load_dwordx4 v[36:39], {v16}, {WS_SRD}, s13 offen sc1')
a(f'v_and_b32 v24, 31, {vL}\nv_lshlrev_b32 v24, 10, v24\nv_lshrrev_b32 v25, 5, {vL}\nv_lshlrev_b32 v25, 3, v25\nv_add_u32 v24, v24, v25')
a(f's_lshl_b32 s12, {sCT2}, 7\ns_and_b32 s13, {sW}, 1\ns_lshl_b32 s13, s13, 6\ns_add_u32 s77, s12, s13')
a(f's_lshl_b32 s12, {sRT2}, 16\ns_lshr_b32 s13, {sW}, 1\ns_lshl_b32 s13, s13, 15\ns_add_u32 s12, s12, s13\ns_add_u32 s76, s12, s77')
for q in range(4): a(f'buffer_load_dwordx2 {vr(40+2*q, 2)}, v24, {X_SRD}, s76 offen offset:{16*q}')
a('v_add_u32 v25, s77, v25')
for q in range(4): a(f'global_load_dwordx2 {vr(48+2*q, 2)}, v25, {ptr("b2")} offset:{16*q}')
a.barrier()
for s in range(1, 4):
    a(f's_xor_b32 s12, {sW}, {s}\ns_mul_i32 s12, s12, 12288\ns_add_u32 s12, s12, {L_RED+(s-1)*4096}\nv_add_u32 v22, s12, {v16}')
    for i in range(4): a(f'ds_write_b128 v22, {vr(160+16*s+4*i, 4)} offset:{1024*i}')
a(f's_lshl_b32 s12, {sW}, 10\ns_add_u32 s12, s12, {L_SST}\nv_add_u32 v22, s12, {v16}')
a('ds_write_b128 v22, v[32:35]\nds_write_b128 v22, v[36:39] offset:4096')
a(f's_mul_i32 s12, {sW}, 12288\ns_add_u32 s12, s12, {L_RED}\nv_add_u32 v22, s12, {v16}')
a(f'v_bfe_u32 v23, {vL}, 4, 1\nv_lshlrev_b32 v23, 1, v23\nv_bfe_u32 v26, {vL}, 1, 1\nv_add_u32 v23, v23, v26\nv_lshlrev_b32 v23, 10, v23')
a(f'v_lshrrev_b32 v26, 5, {vL}\nv_lshlrev_b32 v26, 2, v26\nv_bfe_u32 v27, {vL}, 2, 2\nv_add_u32 v26, v26, v27\nv_lshl_add_u32 v23, v26, 4, v23\nv_and_b32 v26, 1, {vL}\nv_lshl_add_u32 v23, v26, 3, v23')
a(f's_lshr_b32 s12, {sW}, 1\ns_lshl_b32 s12, s12, 12\ns_and_b32 s13, {sW}, 1\ns_lshl_b32 s13, s13, 9\ns_add_u32 s12, s12, s13\ns_add_u32 s12, s12, {L_SST}\nv_add_u32 v23, s12, v23')
a.barrier()
for i in range(12): a(f'ds_read_b128 {vr(64+4*i, 4)}, v22 offset:{1024*i}')
for q in range(4): a(f'ds_read_b64_tr_b16 {vr(56+2*q, 2)}, v23 offset:{128*q}')
for s in range(3):
    for i in range(8): a(f'v_pk_add_f32 {vr(160+2*i, 2)}, {vr(160+2*i, 2)}, {vr(64+16*s+2*i, 2)}')
def unp(dst, src): a(f'v_lshlrev_b32 v{dst}, 16, v{src}\nv_and_b32 v{dst+1}, 0xffff0000, v{src}')
for i in range(8): unp(64+2*i, 48+i)
for i in range(8): a(f'v_pk_add_f32 {vr(160+2*i, 2)}, {vr(160+2*i, 2)}, {vr(64+2*i, 2)}')
for i in range(16): a(f'v_mul_f32 v{64+i}, {fbits(-1.4426950408889634)}, v{160+i}')
for i in range(16): a(f'v_exp_f32 v{64+i}, v{64+i}')
for i in range(16): a(f'v_add_f32 v{64+i}, 1.0, v{64+i}')
for i in range(16): a(f'v_rcp_f32 v{64+i}, v{64+i}')
for i in range(8): a(f'v_pk_mul_f32 {vr(160+2*i, 2)}, {vr(160+2*i, 2)}, {vr(64+2*i, 2)}')
for i in range(8): unp(64+2*i, 56+i)
for i in range(8): unp(80+2*i, 40+i)
for i in range(8): a(f'v_pk_fma_f32 {vr(160+2*i, 2)}, {vr(160+2*i, 2)}, {vr(64+2*i, 2)}, {vr(80+2*i, 2)}')
for i in range(8): a(f'v_cvt_pk_bf16_f32 v{64+i}, v{160+2*i}, v{161+2*i}')
for q in range(4): a(f'buffer_store_dwordx2 {vr(64+2*q, 2)}, v24, {OUT_SRD}, s76 offen offset:{16*q}')
a(f's_or_b32 s12, {sB}, {sW}\ns_cmp_eq_u32 s12, 0\ns_cbranch_scc0 L_fin')
a(f's_mov_b32 s12, {W0}')
publish('s12', 'v22', 'v23')
a.label('L_fin')
if PROF:
    stamp()
    a(f's_cmp_eq_u32 {sW}, 0\ns_cbranch_scc0 L_end')
    for k in range(10): a(f'v_mov_b32 v{32+k}, s{80+2*k}')
    a(f's_lshl_b32 s12, {sB}, 6\ns_add_u32 s12, s12, {PROFB}\nv_mov_b32 v22, 0\ns_mov_b64 exec, 1')
    a(f'buffer_store_dwordx4 v[32:35], v22, {WS_SRD}, s12 offen\nbuffer_store_dwordx4 v[36:39], v22, {WS_SRD}, s12 offen offset:16\nbuffer_store_dwordx2 v[40:41], v22, {WS_SRD}, s12 offen offset:32')
a.label('L_end')

hdr = open(f'cdna_kernels/{NAME}.s.ref').read().split('; @launch')[0]
src = hdr + f"""; @launch grid=(256,1,1) block=(256,1,1) lds={LDS_BYTES}
.amdgcn_target "amdgcn-amd-amdhsa--gfx950"
.text
.globl {NAME}_kernel
.p2align 8
.type {NAME}_kernel,@function
{NAME}_kernel:
{a.text()}  s_endpgm
.section .rodata,"a"
.p2align 6
.amdhsa_kernel {NAME}_kernel
  .amdhsa_next_free_vgpr 432
  .amdhsa_next_free_sgpr 102
  .amdhsa_accum_offset 256
  .amdhsa_group_segment_fixed_size 0
  .amdhsa_kernarg_size 136
  .amdhsa_user_sgpr_count 2
  .amdhsa_user_sgpr_kernarg_segment_ptr 1
  .amdhsa_system_sgpr_workgroup_id_x 1
.end_amdhsa_kernel
"""
open(OUT, 'w').write(src)
print('instructions', a.ninst, 'auto nops', a.auto_nops, 'max vm', a.maxvm, '->', OUT)
```

```python
import sys, struct
sys.path.insert(0, 'gen')
from asmlib import Asm

NAME = "recurrent_scan__ssm_conv_s4__dense_activation_squared_relu__prompt"
PROF = '--prof' in sys.argv
OUT = [a for a in sys.argv[1:] if not a.startswith('--')]
OUT = OUT[0] if OUT else f'cdna_kernels/{NAME}.s'
OPT = dict(x.lstrip('-').split('=') for x in sys.argv[1:] if x.startswith('--') and '=' in x)
def opt(k, d): return int(OPT.get(k, d))

def fbits(x): return '0x%08x' % struct.unpack('<I', struct.pack('<f', x))[0]

XNF, UB, SB, HH, W2T = 0x000000, 0x200000, 0x400000, 0x600000, 0xE00000
FL_LN, FL_H, FL_S, W0 = 0xC00000, 0xC20000, 0xC40000, 0xC60000
PROFB = 0xD00000
DROP = 0x70000000
L_TAB = 98304; TABC = 53 * 528
L_LNS = L_TAB + 2 * TABC
L_CT = L_LNS; CTC = 2080
L_KT = L_TAB; KTC = 4160
L_UT = L_KT + 4 * KTC; UTC = 4608
L_CX = L_UT + 2 * UTC
L_RED = 0
L_SST = 49152
LDS_BYTES = 163840
assert L_CX + 16384 <= L_LNS and L_LNS + 8 * 1040 <= LDS_BYTES

sB, sW, sXCD, sJ, sRT1, sCG, sBPP, sRT2, sCT2, sTAG = 's2', 's3', 's4', 's5', 's6', 's7', 's8', 's9', 's10', 's11'
X_SRD, WS_SRD, W1_SRD, W2_SRD, OUT_SRD, B1_SRD, B2_SRD = 's[52:55]', 's[56:59]', 's[60:63]', 's[64:67]', 's[68:71]', 's[72:75]', 's[16:19]'
P = dict(x=16, are=18, aim=20, bre=22, bim=24, cre=26, cim=28, ldt=30, dsk=32, w1=36, b1=38, w2=40, b2=42, out=44, dbg=46, ws=48)
def ptr(n): return f's[{P[n]}:{P[n]+1}]'
sW1G, sW1L, sW1N = 's76', 's77', 's78'
sCTB = 's79'
sXA, sW2A, sHA0, sHA1, sHST, sFLN, sFH, sFS, sSST, sUA, sSA, sXO = ['s%d' % i for i in range(20, 32)]
sW1, sWH = 's50', 's51'

a = Asm()
nprof = [0]; names = []
def stamp(name=''):
    if PROF:
        k = nprof[0]; nprof[0] += 1; names.append(name)
        assert k < 20
        a('s_memtime s[80:81]'); a.wait_lg(); a(f's_mov_b32 s{82+k}, s80')

def srd(dst, p, nbytes):
    d = int(dst[2:dst.index(':')])
    if d != P[p]: a(f's_mov_b32 s{d}, s{P[p]}\ns_mov_b32 s{d+1}, s{P[p]+1}')
    a(f's_mov_b32 s{d+2}, {nbytes}\ns_mov_b32 s{d+3}, 0x00020000')

def vr(b, n): return f'v[{b}:{b+n-1}]'
def ar(b, n): return f'a[{b}:{b+n-1}]'

slow = []
def poll_issue(vaddr, vtmp):
    a(f'buffer_load_dword {vtmp}, {vaddr}, {WS_SRD}, 0 offen sc1')
def poll_check(vaddr, vtmp):
    k = len(slow); slow.append((vaddr, vtmp))
    a(f'v_cmp_ne_u32 vcc, {sTAG}, {vtmp}')
    a(f's_cbranch_vccnz L_spin{k}')
    a.label(f'L_back{k}')
def publish(sflagoff, vtmp='v5', vzero='v6'):
    a(f'v_mov_b32 {vtmp}, {sTAG}\nv_mov_b32 {vzero}, 0\ns_mov_b64 exec, 1')
    a(f'buffer_store_dword {vtmp}, {vzero}, {WS_SRD}, {sflagoff} offen sc1')
    a('s_mov_b64 exec, -1')

def weave(main, sides):
    sides = sorted(enumerate(sides), key=lambda t: (t[1][0], t[0]))
    si = 0
    while si < len(sides) and sides[si][1][0] < 0:
        sides[si][1][1](); si += 1
    for i, m in enumerate(main):
        m()
        while si < len(sides) and sides[si][1][0] < i + 1:
            sides[si][1][1](); si += 1
    while si < len(sides):
        sides[si][1][1](); si += 1
def spread(items, lo, hi):
    n = len(items)
    return [(lo + (hi - lo) * i / n, f) for i, f in enumerate(items)]
def L(text, tag=None): return lambda: a(text, tag)
def lines(text): return [L(t) for t in text.strip().split('\n') if t.strip()]

vL, v16 = 'v1', 'v2'
vWA, vWB = 'v3', 'v4'
vTT, vTW, vMA, vMB, vC0, vC1, vC2, vKW, vDS = ['v%d' % i for i in range(10, 19)]
vFX, vFU, vFW, vFH, vFS = 'v19', 'v20', 'v21', 'v22', 'v23'
vPT = 'v24'
vPT2 = 'v25'
vUG, vUL = 'v26', 'v27'
ONES = 28
vK0, vUB_, vCXW, vCXR, vSG = 7, 'v11', 'v12', 'v13', 'v14'
vXG, vRR, vSR, vSW = 'v15', 'v16', 'v17', 'v18'
vRW = [240, 241, 242]

a('s_cmp_ge_u32 s2, 256\ns_cbranch_scc1 L_end')
a('s_load_dwordx16 s[16:31], s[0:1], 0\ns_load_dwordx16 s[32:47], s[0:1], 64\ns_load_dwordx2 s[48:49], s[0:1], 128')
a(f'v_and_b32 {vL}, 63, v0\nv_lshrrev_b32 v2, 6, v0\nv_readfirstlane_b32 {sW}, v2')
a(f's_and_b32 {sXCD}, {sB}, 7\ns_lshr_b32 {sJ}, {sB}, 3')
a(f's_and_b32 s12, {sXCD}, 3\ns_lshl_b32 s12, s12, 2\ns_and_b32 s13, {sJ}, 3\ns_add_u32 {sRT1}, s12, s13')
a(f's_lshr_b32 s12, {sXCD}, 2\ns_lshl_b32 s12, s12, 3\ns_lshr_b32 {sCT2}, {sJ}, 2\ns_add_u32 {sCG}, s12, {sCT2}')
a(f's_lshl_b32 s12, {sXCD}, 5\ns_add_u32 {sBPP}, s12, {sJ}')
a(f's_lshl_b32 s12, {sXCD}, 2\ns_add_u32 {sRT2}, s12, s13')
a(f's_and_b32 {sW1}, {sW}, 1\ns_lshr_b32 {sWH}, {sW}, 1')
a(f'v_lshlrev_b32 {v16}, 4, {vL}')
a(f's_lshl_b32 s13, {sBPP}, 1\ns_add_u32 s14, s13, {sWH}')
a(f's_lshl_b32 s12, {sW1}, 7\ns_lshl_b32 s13, s14, 8\ns_add_u32 s13, s13, s12')
a(f'v_lshl_add_u32 v160, {vL}, 1, s13')
a('s_lshl_b32 s13, s14, 1\nv_mov_b32 v161, s13')
a(f'v_mov_b32 v162, {W0}')
a(f'v_lshrrev_b32 v163, 3, {vL}\nv_lshlrev_b32 v163, 10, v163\nv_and_b32 v164, 7, {vL}\nv_bfe_u32 v165, {vL}, 4, 1\nv_lshlrev_b32 v165, 2, v165\nv_xor_b32 v164, v164, v165\nv_lshl_add_u32 v163, v164, 4, v163')
for t3 in range(3):
    a(f'v_add_u32 v164, {64*t3}, {vL}\nv_mul_u32_u24 v165, 5462, v164\nv_lshrrev_b32 v165, 16, v165')
    a(f'v_mul_u32_u24 v166, 12, v165\nv_sub_u32 v164, v164, v166\nv_lshlrev_b32 v164, 4, v164')
    a(f'v_mul_u32_u24 v165, 2752, v165\nv_add_u32 v{7+t3}, v165, v164')
a(f'v_lshlrev_b32 v164, 1, {vL}\nv_mov_b32 v165, 0x100000\nv_cmp_gt_u32 vcc, 32, {vL}\nv_cndmask_b32 v164, v165, v164, vcc')
for i in range(16): a(f'v_accvgpr_write_b32 a{240+i}, 0')
a(f's_lshl_b32 s100, {sB}, 2\ns_add_u32 s100, s100, {sW}')
a(f's_and_b32 s12, {sRT1}, 3\ns_lshl_b32 {sW1N}, s12, 1')
a.wait_lg()
stamp('kernarg')
srd(X_SRD, 'x', 2048*512*2); srd(WS_SRD, 'ws', 0x10000000)
a(f's_lshl_b32 s12, {sB}, 13\ns_lshl_b32 s13, {sW}, 11\ns_add_u32 s12, s12, s13')
XR = 208
a(f'buffer_load_dwordx4 {vr(XR, 4)}, {v16}, {X_SRD}, s12 offen')
a(f'buffer_load_dwordx4 {vr(XR+4, 4)}, {v16}, {X_SRD}, s12 offen offset:1024')
a(f'buffer_load_dword v167, v162, {WS_SRD}, 0 offen sc1')
srd(W2_SRD, 'w2', 1376*512*2)
a(f's_lshr_b32 s12, s100, 3\ns_lshl_b32 s12, s12, 14\ns_and_b32 s13, s100, 7\ns_lshl_b32 s13, s13, 7\ns_add_u32 s12, s12, s13\ns_add_u32 s13, s12, 8192')
a(f's_lshl_b32 s14, {sW}, 11\ns_add_u32 s14, s14, {L_TAB}\ns_mov_b32 m0, s14\ns_add_u32 s14, s14, 1024')
a(f'buffer_load_dwordx4 v163, {W2_SRD}, s12 offen lds', tag='w2u')
a('s_mov_b32 m0, s14')
a(f'buffer_load_dwordx4 v163, {W2_SRD}, s13 offen lds', tag='w2u')
PR = 216
for i, n in enumerate(['are', 'aim', 'bre', 'bim', 'cre', 'cim']):
    a(f'global_load_ushort v{PR+i}, v160, {ptr(n)}')
a(f'global_load_ushort v{PR+6}, v161, {ptr("ldt")}\nglobal_load_ushort v{PR+7}, v161, {ptr("dsk")}')
srd(W1_SRD, 'w1', 512*1376*2)
a(f's_mul_i32 s12, {sW}, {128*2752}\ns_mul_i32 s13, {sCG}, 192\ns_add_u32 s34, s12, s13\ns_mul_i32 s35, {sW}, {24*1024}')
def w1_group_setup():
    a(f's_mul_i32 {sW1G}, {sW1N}, {16*2752}\ns_add_u32 {sW1G}, {sW1G}, s34\ns_mul_i32 {sW1L}, {sW1N}, 3072\ns_add_u32 {sW1L}, {sW1L}, s35')
    a(f's_add_u32 {sW1N}, {sW1N}, 1\ns_and_b32 {sW1N}, {sW1N}, 7')
def w1_one(t3):
    def f():
        if t3 == 0: w1_group_setup()
        a(f's_mov_b32 m0, {sW1L}\ns_add_u32 {sW1L}, {sW1L}, 1024')
        a(f'buffer_load_dwordx4 v{7+t3}, {W1_SRD}, {sW1G} offen lds', tag='w1')
    return f
w1_items = [w1_one(t3) for g in range(8) for t3 in range(3)]
NW1A = opt('nw1a', 6)
for f in w1_items[:NW1A]: f()
srd(B1_SRD, 'b1', 1376*2); srd(OUT_SRD, 'out', 2048*512*2)
a(f's_mul_i32 s12, {sCG}, 192')
for ct in range(3): a(f'buffer_load_ushort a{240+4*ct}, v164, {B1_SRD}, s12 offen offset:{64*ct}')
a(f's_mov_b32 s16, s{P["b2"]}\ns_mov_b32 s17, s{P["b2"]+1}\ns_mov_b32 s18, 1024\ns_mov_b32 s19, 0x00020000')
a(f's_lshl_b32 s12, {sCT2}, 7\ns_lshl_b32 s13, {sW1}, 6\ns_add_u32 s36, s12, s13')
a(f'buffer_load_ushort a252, v164, {B2_SRD}, s36 offen')
stamp('issued')

a(f's_mov_b32 s37, s100\ns_lshl_b32 {sFLN}, s100, 7\ns_add_u32 {sFLN}, {sFLN}, {FL_LN}')
a(f's_mul_i32 {sCTB}, {sWH}, {CTC}\ns_add_u32 {sCTB}, {sCTB}, {L_CT}')
a(f's_lshl_b32 s12, {sW1}, 6\nv_add_u32 {vTT}, s12, {vL}')
a(f'v_lshlrev_b32 v160, 2, {vTT}\nv_add_u32 v233, {sCTB}, v160\nv_add_u32 v234, 2, v233\nv_subrev_u32 v232, 2, v233')
a(f'v_cmp_eq_u32 vcc, 0, {vTT}\nv_mov_b32 v160, {sCTB}\nv_add_u32 v160, 2048, v160\nv_cndmask_b32 v232, v232, v160, vcc')
a(f'v_lshlrev_b32 v160, 1, {vTT}\nv_cvt_f32_u32 v160, v160')
a(f's_sub_u32 s12, {sCTB}, {2*(0x4300-128)}')
for it in range(1, 8):
    a(f'v_add_f32 v161, {fbits(256.0*it-1)}, v160\nv_add_f32 v162, {fbits(256.0*it)}, v160\nv_add_f32 v163, {fbits(256.0*it+1)}, v160')
    a('v_cvt_pk_bf16_f32 v161, v161, v162\nv_cvt_pk_bf16_f32 v163, v163, v163')
    a('v_and_b32 v162, 0xffff, v161\nv_lshrrev_b32 v161, 16, v161\nv_lshrrev_b32 v163, 16, v163')
    a(f'v_lshl_add_u32 v{232+3*it}, v162, 1, s12\nv_lshl_add_u32 v{233+3*it}, v161, 1, s12\nv_lshl_add_u32 v{234+3*it}, v163, 1, s12')
a(f's_mul_i32 s12, {sWH}, {TABC}\ns_add_u32 s12, s12, {L_TAB}\nv_lshl_add_u32 {vTW}, {vTT}, 2, s12')
a(f'v_and_b32 v160, 15, {vL}\nv_lshrrev_b32 v161, 4, {vL}\nv_mul_u32_u24 {vMA}, 528, v160\nv_lshl_add_u32 {vMA}, v161, 4, {vMA}\nv_add_u32 {vMA}, s12, {vMA}')
a(f's_mul_i32 s13, {sW1}, {16*528}\nv_add_u32 {vMB}, s13, {vMA}')
a(f's_lshl_b32 s13, {sW1}, 4\nv_add_u32 v160, s13, v160')
a(f'v_lshlrev_b32 {vC0}, 3, v160\nv_lshl_add_u32 {vC0}, v161, 2, {vC0}')
a(f'v_lshlrev_b32 v162, 2, v160\nv_add_u32 v162, 0x100, v162\nv_cmp_eq_u32 vcc, 2, v161\nv_cndmask_b32 {vC0}, {vC0}, v162, vcc')
a(f'v_lshlrev_b32 v162, 1, v160\nv_add_u32 v162, 0x180, v162\nv_cmp_eq_u32 vcc, 3, v161\nv_cndmask_b32 {vC0}, {vC0}, v162, vcc')
a(f'v_mov_b32 v162, 2\nv_mov_b32 v163, 64\nv_cndmask_b32 v162, v162, v163, vcc\nv_add_u32 {vC1}, {vC0}, v162')
a(f'v_lshl_add_u32 {vC0}, {vC0}, 1, {sCTB}\nv_lshl_add_u32 {vC1}, {vC1}, 1, {sCTB}')
a(f'v_lshl_add_u32 {vC2}, v161, 7, v160\nv_add_u32 {vC2}, 0x200, {vC2}\nv_lshl_add_u32 {vC2}, {vC2}, 1, {sCTB}')
a(f'v_or_b32 {vDS}, v160, v161')
a(f's_mul_i32 s12, {sWH}, {2*KTC}\ns_add_u32 s12, s12, {L_KT}\nv_lshl_add_u32 {vKW}, {vTT}, 2, s12')
a(f'v_lshrrev_b32 v160, 5, {vL}\nv_bfe_u32 v161, {vL}, 2, 2\nv_lshl_add_u32 v160, v160, 3, v161\nv_mul_u32_u24 v160, 192, v160')
a(f'v_bfe_u32 v161, {vL}, 4, 1\nv_lshl_add_u32 v160, v161, 5, v160\nv_and_b32 v161, 3, {vL}\nv_lshl_add_u32 {vWA}, v161, 3, v160\nv_add_u32 {vWB}, 49152, {vWA}')
a(f's_lshl_b32 s12, {sRT1}, 6\ns_lshl_b32 s13, {sW}, 4\ns_add_u32 s12, s12, s13\ns_lshl_b32 s12, s12, 7\ns_add_u32 s12, s12, {FL_LN}')
a(f'v_and_b32 v160, 15, {vL}\nv_lshl_add_u32 {vFX}, v160, 7, s12')
a(f's_lshr_b32 s12, {sBPP}, 5\ns_and_b32 s12, s12, 3\ns_lshl_b32 s13, {sW}, 8\ns_add_u32 s12, s12, s13\ns_lshl_b32 s12, s12, 7\ns_add_u32 s12, s12, {FL_LN}')
a(f'v_lshl_add_u32 {vFU}, {vL}, 9, s12')
a(f's_mul_i32 s12, {sW}, 176\ns_add_u32 s12, s12, {sCT2}\ns_lshl_b32 s12, s12, 7\ns_add_u32 s12, s12, {FL_LN}')
a(f'v_min_u32 v160, 21, {vL}\nv_lshl_add_u32 {vFW}, v160, 10, s12')
a(f's_mul_i32 s14, {sW}, 11\ns_mul_i32 s14, s14, 21846\ns_lshr_b32 s14, s14, 16')
a(f's_lshr_b32 s12, {sRT2}, 1\ns_lshl_b32 s12, s12, 6\ns_and_b32 s13, {sRT2}, 1\ns_lshl_b32 s13, s13, 1\ns_add_u32 s12, s12, s13\ns_lshl_b32 s12, s12, 7\ns_add_u32 s12, s12, {FL_H}')
a(f'v_lshrrev_b32 v160, 1, {vL}\nv_min_u32 v160, 4, v160\nv_add_u32 v160, s14, v160\nv_min_u32 v160, 14, v160\nv_lshlrev_b32 v160, 2, v160\nv_and_b32 v161, 1, {vL}\nv_add_u32 v160, v160, v161\nv_lshl_add_u32 {vFH}, v160, 7, s12')
a(f's_lshl_b32 s12, {sCT2}, 7\ns_lshr_b32 s13, {sRT2}, 4\ns_add_u32 s12, s12, s13\ns_lshl_b32 s12, s12, 7\ns_add_u32 s12, s12, {FL_S}\nv_lshl_add_u32 {vFS}, {vL}, 8, s12')
a(f'v_lshlrev_b32 {vUG}, 13, {vL}\ns_lshl_b32 s12, {sW}, 10\ns_sub_u32 s12, {L_UT+255*16}, s12\nv_sub_u32 {vUL}, s12, {v16}')
a(f'v_mov_b32 v{ONES}, 0x3f80\nv_mov_b32 v{ONES+1}, 0\nv_mov_b32 v{ONES+2}, 0\nv_mov_b32 v{ONES+3}, 0')
a(f's_lshl_b32 s12, {sRT1}, 2\ns_add_u32 s12, s12, {sW}\ns_lshl_b32 {sXA}, s12, 15')
a(f's_mul_i32 s12, s12, 86\ns_mul_i32 s13, {sCG}, 6\ns_add_u32 s12, s12, s13\ns_lshl_b32 s12, s12, 10\ns_add_u32 {sHST}, s12, {HH}')
a(f's_mul_i32 s12, {sCT2}, 88\ns_mul_i32 s13, {sW}, 22\ns_add_u32 s12, s12, s13\ns_lshl_b32 s12, s12, 11\ns_add_u32 {sW2A}, s12, {W2T}')
a(f's_lshl_b32 s12, {sRT2}, 1\ns_add_u32 s14, s12, {sWH}\ns_xor_b32 s13, s14, 1\ns_mul_i32 s14, s14, 86\ns_mul_i32 s13, s13, 86\ns_mul_i32 s12, {sW}, 22')
a(f's_add_u32 s14, s14, s12\ns_add_u32 s13, s13, s12\ns_lshl_b32 s14, s14, 10\ns_lshl_b32 s13, s13, 10\ns_add_u32 {sHA0}, s14, {HH}\ns_add_u32 {sHA1}, s13, {HH}')
a(f's_lshl_b32 s12, {sRT1}, 4\ns_add_u32 s12, s12, {sCG}\ns_lshl_b32 s12, s12, 2\ns_add_u32 s12, s12, {sW}\ns_lshl_b32 s12, s12, 7\ns_add_u32 {sFH}, s12, {FL_H}')
a(f's_lshl_b32 s12, {sBPP}, 2\ns_add_u32 s12, s12, {sW}\ns_lshl_b32 s12, s12, 7\ns_add_u32 {sFS}, s12, {FL_S}')
a(f's_lshl_b32 s13, {sBPP}, 1\ns_add_u32 s12, {sWH}, s13\ns_lshl_b32 s12, s12, 4\ns_lshl_b32 s13, {sW1}, 20\ns_add_u32 s12, s12, s13\ns_add_u32 {sSST}, s12, {SB}')
a(f's_lshl_b32 s12, {sW}, 19\ns_lshl_b32 s13, {sBPP}, 5\ns_add_u32 s12, s12, s13\ns_add_u32 {sUA}, s12, {UB}')
a(f's_lshl_b32 s12, {sRT2}, 3\ns_add_u32 s12, s12, {sW}\ns_lshl_b32 s12, s12, 13\ns_lshl_b32 s13, {sCT2}, 10\ns_add_u32 s12, s12, s13\ns_add_u32 {sSA}, s12, {SB}')
a(f's_lshl_b32 s12, {sRT2}, 16\ns_lshl_b32 s13, {sWH}, 15\ns_add_u32 s12, s12, s13\ns_add_u32 {sXO}, s12, s36')
a(f's_mul_i32 s12, {sW}, 2080\ns_add_u32 s12, s12, {L_LNS}\nv_add_u32 v168, s12, {v16}')
a(f'v_and_b32 v160, 7, v0\nv_lshrrev_b32 v161, 3, v0\nv_mul_u32_u24 v169, 1040, v160\nv_lshl_add_u32 v169, v161, 4, v169\nv_add_u32 v169, {L_LNS}, v169')
a('v_lshlrev_b32 v161, 9, v161\nv_lshl_add_u32 v170, v160, 4, v161')
a(f'v_bfe_u32 v171, v0, 2, 2\nv_sub_u32 v171, 3, v171\nv_mul_u32_u24 v171, 1040, v171')
a(f'v_and_b32 v160, 3, v0\nv_lshlrev_b32 v160, 3, v160\nv_and_b32 v161, 0xf0, v0\nv_lshl_add_u32 v160, v161, 1, v160\nv_add_u32 v171, v171, v160\nv_add_u32 v171, {L_LNS}, v171')
a('v_lshlrev_b32 v172, 4, v0')
a(f'v_lshrrev_b32 v160, 5, {vL}\nv_bfe_u32 v161, {vL}, 2, 2\nv_lshl_add_u32 v160, v160, 2, v161\nv_lshlrev_b32 v160, 7, v160')
a(f'v_bfe_u32 v161, {vL}, 4, 1\nv_lshlrev_b32 v161, 1, v161\nv_bfe_u32 v162, {vL}, 1, 1\nv_add_u32 v161, v161, v162\nv_bfe_u32 v162, {vL}, 3, 1\nv_lshlrev_b32 v162, 2, v162\nv_xor_b32 v161, v161, v162')
a(f'v_lshl_add_u32 v160, v161, 4, v160\nv_and_b32 v161, 1, {vL}\nv_lshl_add_u32 v160, v161, 3, v160')
a(f's_lshl_b32 s12, {sW}, 11\ns_add_u32 s12, s12, {L_TAB}\nv_add_u32 v173, s12, v160\nv_xor_b32 v174, 64, v173')
stamp('precomp')

a('s_mov_b32 s12, 0x3f803f80')
A0 = 176
for k in range(4):
    for r in range(2):
        x = f'v{XR+4*r+k}'; sa, sq = A0 + r, A0 + 2 + r
        a(f'v_dot2_f32_bf16 v{sa}, {x}, s12, {"0" if k == 0 else f"v{sa}"}')
        a(f'v_dot2_f32_bf16 v{sq}, {x}, {x}, {"0" if k == 0 else f"v{sq}"}')
stamp('xarrive')
for mod in ['row_shr:1 row_mask:0xf bank_mask:0xf bound_ctrl:0', 'row_shr:2 row_mask:0xf bank_mask:0xf bound_ctrl:0',
            'row_shr:4 row_mask:0xf bank_mask:0xf bound_ctrl:0', 'row_shr:8 row_mask:0xf bank_mask:0xf bound_ctrl:0',
            'row_bcast:15 row_mask:0xa bank_mask:0xf', 'row_bcast:31 row_mask:0xc bank_mask:0xf']:
    for r in range(A0, A0 + 4): a(f'v_add_f32_dpp v{r}, v{r}, v{r} {mod}')
for r in range(4): a(f'v_readlane_b32 s{12+r}, v{A0+r}, 63')
a(f'v_mov_b32 v180, {fbits(1/512)}')
for r in range(4): a(f'v_mul_f32 v{A0+r}, s{12+r}, v180')
M, Q = vr(A0, 2), vr(A0 + 2, 2)
a(f'v_pk_fma_f32 {Q}, {M}, {M}, {Q} neg_lo:[1,0,0] neg_hi:[1,0,0]')
a(f'v_max_f32 v{A0+2}, 0, v{A0+2}\nv_max_f32 v{A0+3}, 0, v{A0+3}')
def rnd2(lo, hi, t): a(f'v_cvt_pk_bf16_f32 {t}, {lo}, {hi}\nv_lshlrev_b32 {lo}, 16, {t}\nv_and_b32 {hi}, 0xffff0000, {t}')
q0, q1 = f'v{A0+2}', f'v{A0+3}'
rnd2(q0, q1, 'v181'); rnd2(f'v{A0}', f'v{A0+1}', 'v180')
a(f'v_add_f32 {q0}, {fbits(1e-5)}, {q0}\nv_add_f32 {q1}, {fbits(1e-5)}, {q1}')
rnd2(q0, q1, 'v181')
a(f'v_sqrt_f32 {q0}, {q0}\nv_sqrt_f32 {q1}, {q1}')
rnd2(q0, q1, 'v181')
a(f'v_rcp_f32 {q0}, {q0}\nv_rcp_f32 {q1}, {q1}')
a(f'v_readfirstlane_b32 {sTAG}, v167')
a(f'v_pk_mul_f32 {M}, {M}, {Q} neg_lo:[1,0] neg_hi:[1,0]')
a(f's_mul_i32 {sTAG}, {sTAG}, 0x9E3779B1\ns_add_u32 {sTAG}, {sTAG}, 0x7F4A7C15')
for r in range(2):
    sel = 'op_sel:[0,0,0] op_sel_hi:[1,0,0]' if r == 0 else 'op_sel:[0,1,1] op_sel_hi:[1,1,1]'
    for k in range(4):
        x = f'v{XR+4*r+k}'; t = 182 + 2 * k
        a(f'v_lshlrev_b32 v{t}, 16, {x}\nv_and_b32 v{t+1}, 0xffff0000, {x}')
    for k in range(4):
        t = 182 + 2 * k; a(f'v_pk_fma_f32 {vr(t, 2)}, {vr(t, 2)}, {Q}, {M} {sel}')
    for k in range(4):
        t = 182 + 2 * k; a(f'v_cvt_pk_bf16_f32 v{XR+4*r+k}, v{t}, v{t+1}')
    a(f'ds_write_b128 v168, {vr(XR+4*r, 4)} offset:{1040*r}')
a.wait_vm('w2u')
for sl, base in enumerate(['v173', 'v174']):
    for q in range(2): a(f'ds_read_b64_tr_b16 {vr(192+4*sl+2*q, 2)}, {base} offset:{q*1024}')
stamp('lncomp')
a.barrier()
a('ds_read_b128 v[176:179], v169\nds_read_b128 v[180:183], v169 offset:512')
a('ds_read_b64_tr_b16 v[184:185], v171 offset:4160\nds_read_b64_tr_b16 v[186:187], v171')
a('ds_read_b64_tr_b16 v[188:189], v171 offset:4672\nds_read_b64_tr_b16 v[190:191], v171 offset:512')
a(f's_and_b32 s12, s37, 7\ns_mul_i32 s12, s12, 88\ns_lshr_b32 s13, s37, 3\ns_add_u32 s12, s12, s13\ns_lshl_b32 s12, s12, 11\ns_add_u32 s12, s12, {W2T}\ns_cmp_lt_u32 s37, 704\ns_cselect_b32 s14, s12, {DROP}')
a(f's_lshr_b32 s12, {sB}, 2\ns_lshl_b32 s12, s12, 15\ns_and_b32 s13, {sB}, 3\ns_lshl_b32 s13, s13, 7\ns_add_u32 s12, s12, s13\ns_add_u32 s13, s12, 16384')
a(f'buffer_store_dwordx4 v[176:179], v170, {WS_SRD}, s12 offen sc1', tag='ln')
a(f'buffer_store_dwordx4 v[180:183], v170, {WS_SRD}, s13 offen sc1', tag='ln')
a(f's_lshl_b32 s12, {sB}, 13\ns_add_u32 s12, s12, {UB}\ns_add_u32 s13, s12, 4096')
a(f'buffer_store_dwordx4 v[184:187], v172, {WS_SRD}, s12 offen sc1', tag='ln')
a(f'buffer_store_dwordx4 v[188:191], v172, {WS_SRD}, s13 offen sc1', tag='ln')
a(f'buffer_store_dwordx4 v[192:195], {v16}, {WS_SRD}, s14 offen sc1', tag='ln')
a(f'buffer_store_dwordx4 v[196:199], {v16}, {WS_SRD}, s14 offen offset:1024 sc1', tag='ln')
stamp('lnstores')

T = []
def cmul(d, x, y):
    T.append(L(f'v_pk_mul_f32 {vr(d,2)}, {vr(x,2)}, {vr(y,2)} op_sel:[0,0] op_sel_hi:[0,1]'))
    T.append(L(f'v_pk_fma_f32 {vr(d,2)}, {vr(x,2)}, {vr(y,2)}, {vr(d,2)} op_sel:[1,1,0] op_sel_hi:[1,0,1] neg_lo:[1,0,0]'))
for i in range(8): T.append(L(f'v_lshlrev_b32 v{PR+i}, 16, v{PR+i}'))
are, aim, bre, bim, cre, ldt, dsk = PR, PR+1, PR+2, PR+3, PR+4, PR+6, PR+7
T += lines(f'''v_mul_f32 v{ldt}, {fbits(1.4426950408889634)}, v{ldt}
v_exp_f32 v{ldt}, v{ldt}
v_cmp_eq_u32 vcc, 0, {vDS}
v_cvt_pk_bf16_f32 v{ldt}, v{ldt}, v{ldt}
v_lshlrev_b32 v{ldt}, 16, v{ldt}
v_cndmask_b32 {vDS}, 0, v{dsk}, vcc
v_mul_f32 v{are}, v{ldt}, v{are}
v_mul_f32 v{aim}, v{ldt}, v{aim}
v_mul_f32 v{bre}, v{ldt}, v{bre}
v_mul_f32 v{bim}, v{ldt}, v{bim}
v_mul_f32 v{are}, {fbits(1.4426950408889634)}, v{are}
v_mul_f32 v{aim}, {fbits(0.15915494309189535)}, v{aim}''')
G0, E1, E8, E256, E512, E1024, E32 = 160, 162, 164, 166, 168, 170, 172
cmul(G0, cre, bre)
ls = [(E1, 1.0), (E8, 8.0), (E256, 256.0)]
for i, (d, l) in enumerate(ls): T += lines(f'v_mul_f32 v{224+2*i}, {fbits(l)}, v{aim}\nv_mul_f32 v{225+2*i}, {fbits(l)}, v{are}')
for i, (d, l) in enumerate(ls): T += lines(f'v_fract_f32 v{224+2*i}, v{224+2*i}\nv_exp_f32 v{225+2*i}, v{225+2*i}')
for i, (d, l) in enumerate(ls): T += lines(f'v_cos_f32 v{d}, v{224+2*i}\nv_sin_f32 v{d+1}, v{224+2*i}')
for i, (d, l) in enumerate(ls): T += lines(f'v_mul_f32 v{d}, v{225+2*i}, v{d}\nv_mul_f32 v{d+1}, v{225+2*i}, v{d+1}')
tmpc = [224, 225, 226, 227]; tci = [0]
def put(row, x, neg):
    t = tmpc[tci[0] % 4]; tci[0] += 1
    T.append(L(f'v_cvt_pk_bf16_f32 v{t}, v{x}, {"-" if neg else ""}v{x+1}'))
    T.append(L(f'ds_write_b32 {vTW}, v{t} offset:{row*528}'))
T += lines(f'v_mov_b32 v228, 0x00003f80\nds_write_b32 {vTW}, v228')
Pa = [174, 176, 178, 180]; Pb = [182, 184, 186, 188]
cmul(Pa[2], E8, E8); put(1, E8, False)
cmul(E512, E256, E256); put(32, G0, True)
cmul(Pa[3], Pa[2], E8); cmul(E32, Pa[2], Pa[2]); put(2, Pa[2], False)
cmul(E1024, E512, E512)
cmul(Pb[1], E8, E32); put(3, Pa[3], False); cmul(Pb[2], Pa[2], E32); put(4, E32, False); cmul(Pb[3], Pa[3], E32)
put(5, Pb[1], False); put(6, Pb[2], False); put(7, Pb[3], False)
cur = [E32, Pb[1], Pb[2], Pb[3]]
G = {0: G0}; free = [190, 192, 194, 196, 198, 200, 202, 204, 206, 208, 210, 212, 214, 216, 218, 220, 222]
hi_jobs = []
def hj(h, src, e, row):
    def f():
        G[h] = free.pop(0); cmul(G[h], G[src], e); put(row, G[h], True)
        for dead in DEAD.get(h, []): free.append(G[dead])
    hi_jobs.append(f)
DEAD = {2: [1], 4: [3], 6: [5], 7: [7], 258: [258, 2], 262: [262, 6], 516: [516, 4], 772: [772, 260], 1280: [1280, 256], 1536: [1536, 512], 1792: [1792, 768]}
for h in range(1, 8): hj(h, h - 1, E1, 32 + h)
for i, h in enumerate([0, 2, 4, 6]): hj(256 + h, h, E256, 40 + i)
for i, (h, src) in enumerate([(512, 0), (516, 4), (768, 256), (772, 260)]): hj(h, src, E512, 44 + i)
for i, (h, src) in enumerate([(1024, 0), (1280, 256), (1536, 512), (1792, 768), (2048, 1024)]): hj(h, src, E1024, 48 + i)
for q in range(2, 8):
    dst = Pa if q % 2 == 0 else Pb
    for i in range(4):
        cmul(dst[i], cur[i], E32); put(4*q+i, dst[i], False)
        if hi_jobs: hi_jobs.pop(0)()
    cur = list(dst)
assert not hi_jobs
nT = len(T)
def pub_ln():
    a.wait_vm('ln'); publish(sFLN)
sides = spread(w1_items[NW1A:], 2, nT * opt('w1end', 90) / 100)
sides.append((nT * opt('publn', 55) / 100, pub_ln))
sides.append((nT - 1, lambda: poll_issue(vFX, vPT)))
weave(T, sides)
stamp('tables')
a.barrier()

xl_state = [0]
def xload():
    ks = xl_state[0]; xl_state[0] += 1
    a(f'buffer_load_dwordx4 {vr(32+4*ks, 4)}, {v16}, {WS_SRD}, {sXA} offen offset:{(ks % 4)*1024} sc1')
    if ks % 4 == 3: a(f's_add_u32 {sXA}, {sXA}, 4096')
Mn = []
def krd(kk):
    return [L(f'ds_read_b128 {ar(12*kk, 4)}, {vMA} offset:{32*528+64*kk}'), L(f'ds_read_b128 {ar(12*kk+8, 4)}, {vMB} offset:{64*kk}'), L(f'ds_read_b128 {ar(12*kk+4, 4)}, {vMA} offset:{48*528+64*kk}')]
def kmf(k2):
    return [L(f'v_mfma_f32_16x16x32_bf16 v[160:163], {ar(12*k2, 4)}, {ar(12*k2+8, 4)}, {"0" if k2 == 0 else "v[160:163]"}'),
            L(f'v_mfma_f32_16x16x32_bf16 v[164:167], {ar(12*k2+4, 4)}, {ar(12*k2+8, 4)}, {"0" if k2 == 0 else "v[164:167]"}')]
for kk in range(8):
    Mn += krd(kk)
    if kk >= 4: Mn += kmf(kk - 4)
for k2 in range(4, 8): Mn += kmf(k2)
Mn += lines(f'''v_mov_b32 v168, 0
v_mov_b32 v169, {sCTB}
ds_write_b32 v169, v168 offset:2048
v_add_f32 v160, v160, {vDS}
v_cvt_pk_bf16_f32 v162, v162, v163
v_cvt_pk_bf16_f32 v160, v160, v161
v_cvt_pk_bf16_f32 v164, v164, v165
v_cvt_pk_bf16_f32 v166, v166, v167
ds_write_b32 {vC0}, v160
ds_write_b32 {vC1}, v162
ds_write_b16 {vC2}, v164
ds_write_b16_d16_hi {vC2}, v164 offset:64
ds_write_b16 {vC2}, v166 offset:128
ds_write_b16_d16_hi {vC2}, v166 offset:192''')
NX1 = opt('nx1', 4); NX2 = opt('nx2', 8)
sides = [(opt('xchk', 24), lambda: poll_check(vFX, vPT))] + spread([xload] * NX1, opt('xchk', 24) + 1, len(Mn))
weave(Mn, sides)
a.wait_vm('w1')
stamp('kmfma')
a.barrier()
En = []
GB = 168
for it in range(8):
    for e in range(3): En.append(L(f'ds_read_u16 v{GB+3*it+e}, v{232+3*it+e}'))
En += lines(f'''v_mov_b32 v192, 0
v_mov_b32 v193, 0
v_mov_b32 v194, 0
v_mov_b32 v195, 0
v_lshrrev_b32 v196, 5, {vL}
v_mul_u32_u24 v196, {UTC}, v196
v_and_b32 v197, 31, {vL}
v_lshl_add_u32 v196, v197, 4, v196
v_add_u32 v196, {L_UT+4096}, v196
ds_write_b128 v196, v[192:195]''')
En.append(L(f'v_cmp_gt_u32 vcc, 7, {vTT}\ns_and_saveexec_b64 s[14:15], vcc\nds_write_b32 {vKW}, v192\nds_write_b32 {vKW}, v192 offset:{KTC}\ns_mov_b64 exec, s[14:15]'))
for it in range(8):
    b = GB + 3*it
    En += lines(f'v_lshl_or_b32 v{b}, v{b+1}, 16, v{b}\nv_lshl_or_b32 v{b+1}, v{b+2}, 16, v{b+1}\nds_write_b32 {vKW}, v{b} offset:{28+512*it}\nds_write_b32 {vKW}, v{b+1} offset:{KTC+28+512*it}')
def wread(ks, ct):
    base = vWA if ks < 16 else vWB; o = (ks % 16) * 3072; rb = 208 + 12 * (ks % 2)
    for q in range(2): a(f'ds_read_b64_tr_b16 {vr(rb+4*ct+2*q, 2)}, {base} offset:{o+768*q+64*ct}')
weave(En, spread([xload] * NX2, 0, len(En)))
for ct in range(3): wread(0, ct)
stamp('kgen_done')

Gm = []
for ct in range(3):
    Gm.append(L(f'v_mfma_f32_32x32x16_bf16 {vr(160+16*ct, 16)}, {ar(240+4*ct, 4)}, {vr(ONES, 4)}, 0'))
for ks in range(32):
    rb = 208 + 12 * (ks % 2)
    for ct in range(3):
        Gm.append(L(f'v_mfma_f32_32x32x16_bf16 {vr(160+16*ct, 16)}, {vr(rb+4*ct, 4)}, {vr(32+4*ks, 4)}, {vr(160+16*ct, 16)}'))
sides = []
for ks in range(1, 32):
    for ct in range(3):
        sides.append((3 + 3*(ks-1) + ct - 0.5 if False else 3 + 3*(ks-1) + ct - 1 + 0.1, (lambda ks=ks, ct=ct: wread(ks, ct))))
nrem = 32 - NX1 - NX2
for i in range(nrem): sides.append((3*i + 1.5, xload))
w2_state = [0]
p0 = 3 * nrem + 3
sides.append((p0, lambda: poll_issue(vFU, vPT)))
sides.append((p0 + 2, lambda: poll_issue(vFW, vPT2)))
UR = 232
def u_go():
    poll_check(vFU, vPT)
    a(f'buffer_load_dwordx4 {vr(UR, 4)}, {vUG}, {WS_SRD}, {sUA} offen sc1\nbuffer_load_dwordx4 {vr(UR+4, 4)}, {vUG}, {WS_SRD}, {sUA} offen offset:16 sc1')
def w2_go():
    poll_check(vFW, vPT2)
    a(f's_lshl_b32 s12, {sW1}, 10\nv_add_u32 v244, s12, {v16}\nv_xor_b32 v245, 0x400, v244')
pc = opt('g1chk', 80)
sides.append((pc, u_go)); sides.append((pc + 2, w2_go))
vW2a, vW2b = 'v244', 'v245'
def w2load():
    i = w2_state[0]; w2_state[0] += 1
    kk, sl = i // 2, i % 2
    a(f'buffer_load_dwordx4 {ar(8*kk+4*sl, 4)}, {vW2a if sl == 0 else vW2b}, {WS_SRD}, {sW2A} offen sc1')
    if sl: a(f's_add_u32 {sW2A}, {sW2A}, 2048')
for i in range(6): sides.append((pc + 4 + 2.5*i, w2load))
fill = lines(f'''s_mul_i32 s12, {sWH}, {2*KTC}
s_lshl_b32 s13, {sW1}, 8
s_add_u32 s12, s12, s13
s_add_u32 s12, s12, {L_KT}
v_and_b32 v246, 1, {vL}
v_mul_u32_u24 v246, {KTC}, v246
v_bfe_u32 v247, {vL}, 1, 3
v_lshl_add_u32 v246, v247, 2, v246
v_lshrrev_b32 v247, 4, {vL}
v_lshl_add_u32 v246, v247, 4, v246
v_add_u32 v7, s12, v246
v_add_u32 v8, 0x400, v7
v_add_u32 v9, 0x800, v7
v_add_u32 v10, 0xc00, v7
s_mul_i32 s12, {sWH}, {UTC}
s_add_u32 s12, s12, s13
s_add_u32 s12, s12, {L_UT+480}
v_and_b32 v246, 15, {vL}
v_lshlrev_b32 v246, 5, v246
v_lshlrev_b32 v247, 4, v247
v_sub_u32 v246, v247, v246
v_add_u32 {vUB_}, s12, v246
s_lshl_b32 s12, {sW}, 12
s_add_u32 s12, s12, {L_CX}
v_add_u32 {vCXW}, s12, {v16}
s_xor_b32 s13, {sW}, 1
s_lshl_b32 s13, s13, 12
s_add_u32 s13, s13, {L_CX}
v_add_u32 {vCXR}, s13, {v16}
v_and_b32 v246, 15, {vL}
v_lshlrev_b32 v246, 14, v246
v_lshrrev_b32 v247, 5, {vL}
v_lshl_add_u32 v246, v247, 13, v246
v_bfe_u32 v248, {vL}, 4, 1
v_lshl_add_u32 {vSG}, v248, 3, v246
v_and_b32 v246, 31, {vL}
v_lshlrev_b32 v246, 10, v246
v_lshl_add_u32 {vXG}, v247, 3, v246
s_mul_i32 s12, {sW}, 12288
s_add_u32 s12, s12, {L_RED}
v_add_u32 {vRR}, s12, {v16}
s_xor_b32 s12, {sW}, 1
s_mul_i32 s12, s12, 12288
s_add_u32 s12, s12, {L_RED}
v_add_u32 v{vRW[0]}, s12, {v16}
s_xor_b32 s12, {sW}, 2
s_mul_i32 s12, s12, 12288
s_add_u32 s12, s12, {L_RED+4096}
v_add_u32 v{vRW[1]}, s12, {v16}
s_xor_b32 s12, {sW}, 3
s_mul_i32 s12, s12, 12288
s_add_u32 s12, s12, {L_RED+8192}
v_add_u32 v{vRW[2]}, s12, {v16}
s_lshl_b32 s12, {sW}, 10
s_add_u32 s12, s12, {L_SST}
v_add_u32 {vSW}, s12, {v16}
v_lshlrev_b32 v246, 1, v248
v_bfe_u32 v248, {vL}, 1, 1
v_add_u32 v246, v246, v248
v_lshlrev_b32 v246, 10, v246
v_lshlrev_b32 v247, 2, v247
v_bfe_u32 v248, {vL}, 2, 2
v_add_u32 v247, v247, v248
v_lshl_add_u32 v246, v247, 4, v246
v_and_b32 v247, 1, {vL}
v_lshl_add_u32 v246, v247, 3, v246
s_lshl_b32 s12, {sWH}, 12
s_lshl_b32 s13, {sW1}, 9
s_add_u32 s12, s12, s13
s_add_u32 s12, s12, {L_SST}
v_add_u32 {vSR}, s12, v246''')
sides += spread(fill, 4, pc - 2)
sides.append((len(Gm) - 1.5, lambda: a(f'ds_write_b128 {vUL}, {vr(UR, 4)}\nds_write_b128 {vUL}, {vr(UR+4, 4)} offset:{UTC}')))
weave(Gm, sides)
stamp('gemm1')
a.barrier()

def conv_reads(rr):
    kb = 32 + 64 * (rr % 2); ub = kb + 32; out = []
    for q in range(8): out.append(L(f'ds_read_b128 {vr(ub+4*q, 4)}, {vUB_} offset:{3584-512*q+64*rr}'))
    for q in range(8):
        base = f'v{vK0 + q // 2}'; o = 16*rr + 128*(q % 2)
        out.append(L(f'ds_read2_b32 {vr(kb+4*q, 2)}, {base} offset0:{o} offset1:{o+1}'))
        out.append(L(f'ds_read2_b32 {vr(kb+4*q+2, 2)}, {base} offset0:{o+2} offset1:{o+3}'))
    return out
Ep = []
for ct in range(3):
    b = 160 + 16*ct
    Ep.append(L(f's_mul_i32 s13, {sCG}, 3\ns_add_u32 s13, s13, {ct}\ns_cmp_lt_u32 s13, 43\ns_cselect_b32 s14, {sHST}, {DROP}\ns_add_u32 {sHST}, {sHST}, 2048'))
    for hf in range(2):
        bb = b + 8 * hf
        for i in range(8): Ep.append(L(f'v_max_f32 v{bb+i}, 0, v{bb+i}'))
        for i in range(4): Ep.append(L(f'v_pk_mul_f32 {vr(bb+2*i, 2)}, {vr(bb+2*i, 2)}, {vr(bb+2*i, 2)}'))
        for i in range(4): Ep.append(L(f'v_cvt_pk_bf16_f32 v{bb+i}, v{bb+2*i}, v{bb+2*i+1}'))
        Ep.append(L(f'buffer_store_dwordx4 {vr(bb, 4)}, {v16}, {WS_SRD}, s14 offen offset:{1024*hf} sc1', tag='h'))
weave(Ep, spread(conv_reads(0), 0, len(Ep) - 10) + spread([w2load] * 4, 8, len(Ep)))
stamp('epi1')

CA = 208
Cm = []; sides = []
for rr in range(4):
    kb = 32 + 64 * (rr % 2); ub = kb + 32
    base = len(Cm)
    for q in range(8):
        for ct in range(q, 8):
            c = "0" if (rr == 0 and q == 0) else vr(CA+4*ct, 4)
            Cm.append(L(f'v_mfma_f32_16x16x32_bf16 {vr(CA+4*ct, 4)}, {vr(kb+4*q, 4)}, {vr(ub+4*(ct-q), 4)}, {c}'))
    if rr + 1 < 4: sides += spread(conv_reads(rr + 1), base, base + 34)
nw2 = 44 - w2_state[0]
sides += spread([w2load] * nw2, 1, opt('w2end', 120))
def pub_h():
    a.wait_vm('h'); publish(sFH)
sides.append((opt('pubh', 70), pub_h))
XE = 248
for q in range(4): sides.append((122 + 3*q, L(f'buffer_load_dwordx2 {vr(XE+2*q, 2)}, {vXG}, {X_SRD}, {sXO} offen offset:{16*q}')))
sides.append((opt('hpoll', 136), lambda: poll_issue(vFH, vPT)))
weave(Cm, sides)
stamp('conv')
h_state = [0]
def hreg(kk, sl):
    return ar(176 + 8*kk + 4*sl, 4) if kk < 8 else vr(32 + 8*(kk-8) + 4*sl, 4)
def hload():
    i = h_state[0]; h_state[0] += 1
    kk, sl = i // 2, i % 2
    sreg = sHA0 if sl == 0 else sHA1
    off = (kk % 4) * 1024
    if kk >= 20:
        a(f's_cmp_eq_u32 {sW}, 3\ns_cselect_b32 s12, 4096, 0\ns_sub_u32 s12, {sreg}, s12')
        a(f'buffer_load_dwordx4 {hreg(kk, sl)}, {v16}, {WS_SRD}, s12 offen offset:{off} sc1')
    else:
        a(f'buffer_load_dwordx4 {hreg(kk, sl)}, {v16}, {WS_SRD}, {sreg} offen offset:{off} sc1')
        if kk % 4 == 3: a(f's_add_u32 {sreg}, {sreg}, 4096')
a(f's_cmp_eq_u32 {sW1}, 0\ns_cbranch_scc0 L_cx1')
a.save('cx')
def cx(keep, send):
    for i in range(4): a(f'ds_write_b128 {vCXW}, {vr(send+4*i, 4)} offset:{1024*i}')
    a.barrier()
    for i in range(4): a(f'ds_read_b128 {vr(144+4*i, 4)}, {vCXR} offset:{1024*i}')
    for i in range(8): a(f'v_pk_add_f32 {vr(144+2*i, 2)}, {vr(144+2*i, 2)}, {vr(keep+2*i, 2)}')
cx(CA, CA + 16)
a('s_branch L_cx2')
a.save('cxa'); a.restore('cx')
a.label('L_cx1')
cx(CA + 16, CA)
a.label('L_cx2'); a.merge('cxa')
for i in range(8): a(f'v_cvt_pk_bf16_f32 v{144+i}, v{144+2*i}, v{145+2*i}')
for i in range(4):
    a(f'buffer_store_dwordx2 {vr(144+2*i, 2)}, {vSG}, {WS_SRD}, {sSST} offen sc1', tag='s')
    a(f's_add_u32 {sSST}, {sSST}, 0x40000')
poll_check(vFH, vPT)
NH1 = opt('nh1', 12)
for i in range(NH1): hload()
stamp('cx')

Gm = [L(f'v_mfma_f32_32x32x16_bf16 {vr(160, 16)}, {ar(252, 4)}, {vr(ONES, 4)}, 0')]
for kk in range(22):
    for s in range(4):
        c = "0" if (kk == 0 and s > 0) else vr(160+16*s, 16)
        Gm.append(L(f'v_mfma_f32_32x32x16_bf16 {vr(160+16*s, 16)}, {ar(8*kk+4*(s & 1), 4)}, {hreg(kk, s >> 1)}, {c}'))
sides = [(2*i + 0.5, hload) for i in range(44 - NH1)]
def pub_s():
    a.wait_vm('s'); publish(sFS)
sides.append((opt('pubs', 12), pub_s))
sides.append((opt('spoll', 66), lambda: poll_issue(vFS, vPT)))
SR = 224
def s_go():
    poll_check(vFS, vPT)
    a(f's_add_u32 s13, {sSA}, 32768')
    a(f'buffer_load_dwordx4 {vr(SR, 4)}, {v16}, {WS_SRD}, {sSA} offen sc1\nbuffer_load_dwordx4 {vr(SR+4, 4)}, {v16}, {WS_SRD}, s13 offen sc1')
sides.append((opt('schk', 78), s_go))
weave(Gm, sides)
stamp('gemm2')
for s in range(1, 4):
    for i in range(4): a(f'ds_write_b128 v{vRW[s-1]}, {vr(160+16*s+4*i, 4)} offset:{1024*i}')
a(f'ds_write_b128 {vSW}, {vr(SR, 4)}\nds_write_b128 {vSW}, {vr(SR+4, 4)} offset:4096')
def unp(dst, src): a(f'v_lshlrev_b32 v{dst}, 16, v{src}\nv_and_b32 v{dst+1}, 0xffff0000, v{src}')
for i in range(8): unp(112+2*i, XE+i)
a.barrier()
for i in range(12): a(f'ds_read_b128 {vr(64+4*i, 4)}, {vRR} offset:{1024*i}')
for q in range(4): a(f'ds_read_b64_tr_b16 {vr(56+2*q, 2)}, {vSR} offset:{128*q}')
for q in range(4):
    for s in range(3):
        for i in range(2): a(f'v_pk_add_f32 {vr(160+4*q+2*i, 2)}, {vr(160+4*q+2*i, 2)}, {vr(64+16*s+4*q+2*i, 2)}')
for i in range(16): a(f'v_mul_f32 v{64+i}, {fbits(-1.4426950408889634)}, v{160+i}')
for i in range(16): a(f'v_exp_f32 v{64+i}, v{64+i}')
for i in range(8): unp(80+2*i, 56+i)
for i in range(16): a(f'v_add_f32 v{64+i}, 1.0, v{64+i}')
for i in range(16): a(f'v_rcp_f32 v{64+i}, v{64+i}')
for i in range(8): a(f'v_pk_mul_f32 {vr(160+2*i, 2)}, {vr(160+2*i, 2)}, {vr(80+2*i, 2)}')
for q in range(4):
    for i in range(2*q, 2*q+2): a(f'v_pk_fma_f32 {vr(160+2*i, 2)}, {vr(160+2*i, 2)}, {vr(64+2*i, 2)}, {vr(112+2*i, 2)}')
    for i in range(2*q, 2*q+2): a(f'v_cvt_pk_bf16_f32 v{96+i}, v{160+2*i}, v{161+2*i}')
    a(f'buffer_store_dwordx2 {vr(96+2*q, 2)}, {vXG}, {OUT_SRD}, {sXO} offen offset:{16*q}')
a(f's_or_b32 s12, {sB}, {sW}\ns_cmp_eq_u32 s12, 0\ns_cbranch_scc0 L_fin')
a(f's_mov_b32 s12, {W0}')
publish('s12')
a.label('L_fin')
if PROF:
    stamp('end')
    a(f's_cmp_eq_u32 {sW}, 0\ns_cbranch_scc0 L_end')
    for k in range(20): a(f'v_mov_b32 v{32+k}, s{82+k}')
    a(f's_lshl_b32 s12, {sB}, 7\ns_add_u32 s12, s12, {PROFB}\nv_mov_b32 v22, 0\ns_mov_b64 exec, 1')
    for k in range(5): a(f'buffer_store_dwordx4 {vr(32+4*k, 4)}, v22, {WS_SRD}, s12 offen offset:{16*k}')
    open(OUT + '.names', 'w').write(','.join(names))
a.label('L_end')
a.raw('  s_endpgm')
for k, (vaddr, vtmp) in enumerate(slow):
    a.raw(f'''L_spin{k}:
  s_mov_b32 s33, 0
L_spinl{k}:
  buffer_load_dword {vtmp}, {vaddr}, {WS_SRD}, 0 offen sc1
  s_add_u32 s33, s33, 1
  s_waitcnt vmcnt(0)
  v_cmp_ne_u32 vcc, {sTAG}, {vtmp}
  s_cbranch_vccz L_back{k}
  s_cmp_lt_u32 s33, 20000
  s_cbranch_scc1 L_spinl{k}
  s_branch L_back{k}''')

hdr = open(f'cdna_kernels/{NAME}.s.ref').read().split('; @launch')[0]
src = hdr + f"""; @launch grid=(256,1,1) block=(256,1,1) lds={LDS_BYTES}
.amdgcn_target "amdgcn-amd-amdhsa--gfx950"
.text
.globl {NAME}_kernel
.p2align 8
.type {NAME}_kernel,@function
{NAME}_kernel:
{a.text()}.section .rodata,"a"
.p2align 6
.amdhsa_kernel {NAME}_kernel
  .amdhsa_next_free_vgpr 512
  .amdhsa_next_free_sgpr 102
  .amdhsa_accum_offset 256
  .amdhsa_group_segment_fixed_size 0
  .amdhsa_kernarg_size 136
  .amdhsa_user_sgpr_count 2
  .amdhsa_user_sgpr_kernarg_segment_ptr 1
  .amdhsa_system_sgpr_workgroup_id_x 1
.end_amdhsa_kernel
"""
open(OUT, 'w').write(src)
print('instructions', a.ninst, 'auto nops', a.auto_nops, 'max vm', a.maxvm, '->', OUT)
```

```python
import sys, struct
sys.path.insert(0, 'gen')
from asmlib import Asm

NAME = "recurrent_scan__ssm_conv_s4__dense_activation_squared_relu__prompt"
PROF = '--prof' in sys.argv
OUT = [a for a in sys.argv[1:] if not a.startswith('--')]
OUT = OUT[0] if OUT else f'cdna_kernels/{NAME}.s'
OPT = dict(x.lstrip('-').split('=') for x in sys.argv[1:] if x.startswith('--') and '=' in x)
def opt(k, d): return int(OPT.get(k, d))

def fbits(x): return '0x%08x' % struct.unpack('<I', struct.pack('<f', x))[0]

XNF, UB, SB, HH, W2T = 0x000000, 0x200000, 0x400000, 0x600000, 0xE00000
FL_LN, FL_H, FL_S, W0 = 0xC00000, 0xC20000, 0xC40000, 0xC60000
PROFB = 0xD00000
DROP = 0x70000000
L_TAB = 98304; TABC = 53 * 528
L_LNS = L_TAB + 2 * TABC
L_CT = L_LNS; CTC = 2080
L_KT = L_TAB; KTC = 4160
L_UT = L_KT + 4 * KTC; UTC = 4608
L_CX = L_UT + 2 * UTC
L_RED = 0
L_SST = 49152
LDS_BYTES = 163840
assert L_CX + 16384 <= L_LNS and L_LNS + 8 * 1040 <= LDS_BYTES

sB, sW, sXCD, sJ, sRT1, sCG, sBPP, sRT2, sCT2, sTAG = 's2', 's3', 's4', 's5', 's6', 's7', 's8', 's9', 's10', 's11'
X_SRD, WS_SRD, W1_SRD, W2_SRD, OUT_SRD, B1_SRD, B2_SRD = 's[52:55]', 's[56:59]', 's[60:63]', 's[64:67]', 's[68:71]', 's[72:75]', 's[16:19]'
P = dict(x=16, are=18, aim=20, bre=22, bim=24, cre=26, cim=28, ldt=30, dsk=32, w1=36, b1=38, w2=40, b2=42, out=44, dbg=46, ws=48)
def ptr(n): return f's[{P[n]}:{P[n]+1}]'
sW1G, sW1L, sW1N = 's76', 's77', 's78'
sCTB = 's79'
sXA, sW2A, sHA0, sHA1, sHST, sFLN, sFH, sFS, sSST, sUA, sSA, sXO = ['s%d' % i for i in range(20, 32)]
sW1, sWH = 's50', 's51'

a = Asm()
nprof = [0]; names = []
def stamp(name=''):
    if PROF:
        k = nprof[0]; nprof[0] += 1; names.append(name)
        assert k < 20
        a('s_memtime s[80:81]'); a.wait_lg(); a(f's_mov_b32 s{82+k}, s80')

def srd(dst, p, nbytes):
    d = int(dst[2:dst.index(':')])
    if d != P[p]: a(f's_mov_b32 s{d}, s{P[p]}\ns_mov_b32 s{d+1}, s{P[p]+1}')
    a(f's_mov_b32 s{d+2}, {nbytes}\ns_mov_b32 s{d+3}, 0x00020000')

def vr(b, n): return f'v[{b}:{b+n-1}]'
def ar(b, n): return f'a[{b}:{b+n-1}]'

slow = []
def poll_issue(vaddr, vtmp):
    a(f'buffer_load_dword {vtmp}, {vaddr}, {WS_SRD}, 0 offen sc1')
def poll_check(vaddr, vtmp):
    k = len(slow); slow.append((vaddr, vtmp))
    a(f'v_cmp_ne_u32 vcc, {sTAG}, {vtmp}')
    a(f's_cbranch_vccnz L_spin{k}')
    a.label(f'L_back{k}')
def publish(sflagoff, vtmp='v5', vzero='v6'):
    a(f'v_mov_b32 {vtmp}, {sTAG}\nv_mov_b32 {vzero}, 0\ns_mov_b64 exec, 1')
    a(f'buffer_store_dword {vtmp}, {vzero}, {WS_SRD}, {sflagoff} offen sc1')
    a('s_mov_b64 exec, -1')

def weave(main, sides):
    sides = sorted(enumerate(sides), key=lambda t: (t[1][0], t[0]))
    si = 0
    while si < len(sides) and sides[si][1][0] < 0:
        sides[si][1][1](); si += 1
    for i, m in enumerate(main):
        m()
        while si < len(sides) and sides[si][1][0] < i + 1:
            sides[si][1][1](); si += 1
    while si < len(sides):
        sides[si][1][1](); si += 1
def spread(items, lo, hi):
    n = len(items)
    return [(lo + (hi - lo) * i / n, f) for i, f in enumerate(items)]
def L(text, tag=None): return lambda: a(text, tag)
def lines(text): return [L(t) for t in text.strip().split('\n') if t.strip()]

vL, v16 = 'v1', 'v2'
vWA, vWB = 'v3', 'v4'
vTT, vTW, vMA, vMB, vC0, vC1, vC2, vKW, vDS = ['v%d' % i for i in range(10, 19)]
vFX, vFU, vFW, vFH, vFS = 'v19', 'v20', 'v21', 'v22', 'v23'
vPT = 'v24'
vPT2 = 'v25'
vUG, vUL = 'v26', 'v27'
ONES = 28
vK0, vUB_, vCXW, vCXR, vSG = 7, 'v11', 'v12', 'v13', 'v14'
vXG, vRR, vSR, vSW = 'v15', 'v16', 'v17', 'v18'
vRW = [240, 241, 242]

a('s_cmp_ge_u32 s2, 256\ns_cbranch_scc1 L_end')
a('s_load_dwordx16 s[16:31], s[0:1], 0\ns_load_dwordx16 s[32:47], s[0:1], 64\ns_load_dwordx2 s[48:49], s[0:1], 128')
a(f'v_and_b32 {vL}, 63, v0\nv_lshrrev_b32 v2, 6, v0\nv_readfirstlane_b32 {sW}, v2')
a(f's_and_b32 {sXCD}, {sB}, 7\ns_lshr_b32 {sJ}, {sB}, 3')
a(f's_and_b32 s12, {sXCD}, 3\ns_lshl_b32 s12, s12, 2\ns_and_b32 s13, {sJ}, 3\ns_add_u32 {sRT1}, s12, s13')
a(f's_lshr_b32 s12, {sXCD}, 2\ns_lshl_b32 s12, s12, 3\ns_lshr_b32 {sCT2}, {sJ}, 2\ns_add_u32 {sCG}, s12, {sCT2}')
a(f's_lshl_b32 s12, {sXCD}, 5\ns_add_u32 {sBPP}, s12, {sJ}')
a(f's_lshl_b32 s12, {sXCD}, 2\ns_add_u32 {sRT2}, s12, s13')
a(f's_and_b32 {sW1}, {sW}, 1\ns_lshr_b32 {sWH}, {sW}, 1')
a(f'v_lshlrev_b32 {v16}, 4, {vL}')
a(f's_lshl_b32 s13, {sBPP}, 1\ns_add_u32 s14, s13, {sWH}')
a(f's_lshl_b32 s12, {sW1}, 7\ns_lshl_b32 s13, s14, 8\ns_add_u32 s13, s13, s12')
a(f'v_lshl_add_u32 v160, {vL}, 1, s13')
a('s_lshl_b32 s13, s14, 1\nv_mov_b32 v161, s13')
a(f'v_mov_b32 v162, {W0}')
a(f'v_lshrrev_b32 v163, 3, {vL}\nv_lshlrev_b32 v163, 10, v163\nv_and_b32 v164, 7, {vL}\nv_bfe_u32 v165, {vL}, 4, 1\nv_lshlrev_b32 v165, 2, v165\nv_xor_b32 v164, v164, v165\nv_lshl_add_u32 v163, v164, 4, v163')
for t3 in range(3):
    a(f'v_add_u32 v164, {64*t3}, {vL}\nv_mul_u32_u24 v165, 5462, v164\nv_lshrrev_b32 v165, 16, v165')
    a(f'v_mul_u32_u24 v166, 12, v165\nv_sub_u32 v164, v164, v166\nv_lshlrev_b32 v164, 4, v164')
    a(f'v_mul_u32_u24 v165, 2752, v165\nv_add_u32 v{7+t3}, v165, v164')
a(f'v_lshlrev_b32 v164, 1, {vL}\nv_mov_b32 v165, 0x100000\nv_cmp_gt_u32 vcc, 32, {vL}\nv_cndmask_b32 v164, v165, v164, vcc')
for i in range(16): a(f'v_accvgpr_write_b32 a{240+i}, 0')
a(f's_lshl_b32 s100, {sB}, 2\ns_add_u32 s100, s100, {sW}')
a(f's_and_b32 s12, {sRT1}, 3\ns_lshl_b32 {sW1N}, s12, 1')
a.wait_lg()
stamp('kernarg')
if 'dbgwg' in OPT:
    a('s_memrealtime s[80:81]'); a.wait_lg(); a('s_mov_b32 s101, s80')
srd(X_SRD, 'x', 2048*512*2); srd(WS_SRD, 'ws', 0x10000000)
a(f's_lshl_b32 s12, {sB}, 13\ns_lshl_b32 s13, {sW}, 11\ns_add_u32 s12, s12, s13')
XR = 208
a(f'buffer_load_dwordx4 {vr(XR, 4)}, {v16}, {X_SRD}, s12 offen')
a(f'buffer_load_dwordx4 {vr(XR+4, 4)}, {v16}, {X_SRD}, s12 offen offset:1024')
a(f'buffer_load_dword v167, v162, {WS_SRD}, 0 offen sc1')
srd(W2_SRD, 'w2', 1376*512*2)
a(f's_lshr_b32 s12, s100, 3\ns_lshl_b32 s12, s12, 14\ns_and_b32 s13, s100, 7\ns_lshl_b32 s13, s13, 7\ns_add_u32 s12, s12, s13\ns_add_u32 s13, s12, 8192')
a(f's_lshl_b32 s14, {sW}, 11\ns_add_u32 s14, s14, {L_TAB}\ns_mov_b32 m0, s14\ns_add_u32 s14, s14, 1024')
a(f'buffer_load_dwordx4 v163, {W2_SRD}, s12 offen lds', tag='w2u')
a('s_mov_b32 m0, s14')
a(f'buffer_load_dwordx4 v163, {W2_SRD}, s13 offen lds', tag='w2u')
PR = 216
for i, n in enumerate(['are', 'aim', 'bre', 'bim', 'cre', 'cim']):
    a(f'global_load_ushort v{PR+i}, v160, {ptr(n)}')
a(f'global_load_ushort v{PR+6}, v161, {ptr("ldt")}\nglobal_load_ushort v{PR+7}, v161, {ptr("dsk")}')
srd(W1_SRD, 'w1', 512*1376*2)
a(f's_mul_i32 s12, {sW}, {128*2752}\ns_mul_i32 s13, {sCG}, 192\ns_add_u32 s34, s12, s13\ns_mul_i32 s35, {sW}, {24*1024}')
def w1_group_setup():
    a(f's_mul_i32 {sW1G}, {sW1N}, {16*2752}\ns_add_u32 {sW1G}, {sW1G}, s34\ns_mul_i32 {sW1L}, {sW1N}, 3072\ns_add_u32 {sW1L}, {sW1L}, s35')
    a(f's_add_u32 {sW1N}, {sW1N}, 1\ns_and_b32 {sW1N}, {sW1N}, 7')
def w1_one(t3):
    def f():
        if t3 == 0: w1_group_setup()
        a(f's_mov_b32 m0, {sW1L}\ns_add_u32 {sW1L}, {sW1L}, 1024')
        a(f'buffer_load_dwordx4 v{7+t3}, {W1_SRD}, {sW1G} offen lds', tag='w1')
    return f
w1_items = [w1_one(t3) for g in range(8) for t3 in range(3)]
NW1A = opt('nw1a', 6)
for f in w1_items[:NW1A]: f()
srd(B1_SRD, 'b1', 1376*2); srd(OUT_SRD, 'out', 2048*512*2)
a(f's_mul_i32 s12, {sCG}, 192')
for ct in range(3): a(f'buffer_load_ushort a{240+4*ct}, v164, {B1_SRD}, s12 offen offset:{64*ct}')
a(f's_mov_b32 s16, s{P["b2"]}\ns_mov_b32 s17, s{P["b2"]+1}\ns_mov_b32 s18, 1024\ns_mov_b32 s19, 0x00020000')
a(f's_lshl_b32 s12, {sCT2}, 7\ns_lshl_b32 s13, {sW1}, 6\ns_add_u32 s36, s12, s13')
a(f'buffer_load_ushort a252, v164, {B2_SRD}, s36 offen')
stamp('issued')

a(f's_mov_b32 s37, s100\ns_lshl_b32 {sFLN}, s100, 7\ns_add_u32 {sFLN}, {sFLN}, {FL_LN}')
a(f's_mul_i32 {sCTB}, {sWH}, {CTC}\ns_add_u32 {sCTB}, {sCTB}, {L_CT}')
a(f's_lshl_b32 s12, {sW1}, 6\nv_add_u32 {vTT}, s12, {vL}')
a(f'v_lshlrev_b32 v160, 2, {vTT}\nv_add_u32 v233, {sCTB}, v160\nv_add_u32 v234, 2, v233\nv_subrev_u32 v232, 2, v233')
a(f'v_cmp_eq_u32 vcc, 0, {vTT}\nv_mov_b32 v160, {sCTB}\nv_add_u32 v160, 2048, v160\nv_cndmask_b32 v232, v232, v160, vcc')
a(f'v_lshlrev_b32 v160, 1, {vTT}\nv_cvt_f32_u32 v160, v160')
a(f's_sub_u32 s12, {sCTB}, {2*(0x4300-128)}')
for it in range(1, 8):
    a(f'v_add_f32 v161, {fbits(256.0*it-1)}, v160\nv_add_f32 v162, {fbits(256.0*it)}, v160\nv_add_f32 v163, {fbits(256.0*it+1)}, v160')
    a('v_cvt_pk_bf16_f32 v161, v161, v162\nv_cvt_pk_bf16_f32 v163, v163, v163')
    a('v_and_b32 v162, 0xffff, v161\nv_lshrrev_b32 v161, 16, v161\nv_lshrrev_b32 v163, 16, v163')
    a(f'v_lshl_add_u32 v{232+3*it}, v162, 1, s12\nv_lshl_add_u32 v{233+3*it}, v161, 1, s12\nv_lshl_add_u32 v{234+3*it}, v163, 1, s12')
a(f's_mul_i32 s12, {sWH}, {TABC}\ns_add_u32 s12, s12, {L_TAB}\nv_lshl_add_u32 {vTW}, {vTT}, 2, s12')
a(f'v_and_b32 v160, 15, {vL}\nv_lshrrev_b32 v161, 4, {vL}\nv_mul_u32_u24 {vMA}, 528, v160\nv_lshl_add_u32 {vMA}, v161, 4, {vMA}\nv_add_u32 {vMA}, s12, {vMA}')
a(f's_mul_i32 s13, {sW1}, {16*528}\nv_add_u32 {vMB}, s13, {vMA}')
a(f's_lshl_b32 s13, {sW1}, 4\nv_add_u32 v160, s13, v160')
a(f'v_lshlrev_b32 {vC0}, 3, v160\nv_lshl_add_u32 {vC0}, v161, 2, {vC0}')
a(f'v_lshlrev_b32 v162, 2, v160\nv_add_u32 v162, 0x100, v162\nv_cmp_eq_u32 vcc, 2, v161\nv_cndmask_b32 {vC0}, {vC0}, v162, vcc')
a(f'v_lshlrev_b32 v162, 1, v160\nv_add_u32 v162, 0x180, v162\nv_cmp_eq_u32 vcc, 3, v161\nv_cndmask_b32 {vC0}, {vC0}, v162, vcc')
a(f'v_mov_b32 v162, 2\nv_mov_b32 v163, 64\nv_cndmask_b32 v162, v162, v163, vcc\nv_add_u32 {vC1}, {vC0}, v162')
a(f'v_lshl_add_u32 {vC0}, {vC0}, 1, {sCTB}\nv_lshl_add_u32 {vC1}, {vC1}, 1, {sCTB}')
a(f'v_lshl_add_u32 {vC2}, v161, 7, v160\nv_add_u32 {vC2}, 0x200, {vC2}\nv_lshl_add_u32 {vC2}, {vC2}, 1, {sCTB}')
a(f'v_or_b32 {vDS}, v160, v161')
a(f's_mul_i32 s12, {sWH}, {2*KTC}\ns_add_u32 s12, s12, {L_KT}\nv_lshl_add_u32 {vKW}, {vTT}, 2, s12')
a(f'v_lshrrev_b32 v160, 5, {vL}\nv_bfe_u32 v161, {vL}, 2, 2\nv_lshl_add_u32 v160, v160, 3, v161\nv_mul_u32_u24 v160, 192, v160')
a(f'v_bfe_u32 v161, {vL}, 4, 1\nv_lshl_add_u32 v160, v161, 5, v160\nv_and_b32 v161, 3, {vL}\nv_lshl_add_u32 {vWA}, v161, 3, v160\nv_add_u32 {vWB}, 49152, {vWA}')
a(f's_lshl_b32 s12, {sRT1}, 6\ns_lshl_b32 s13, {sW}, 4\ns_add_u32 s12, s12, s13\ns_lshl_b32 s12, s12, 7\ns_add_u32 s12, s12, {FL_LN}')
a(f'v_and_b32 v160, 15, {vL}\nv_lshl_add_u32 {vFX}, v160, 7, s12')
a(f's_lshr_b32 s12, {sBPP}, 5\ns_and_b32 s12, s12, 3\ns_lshl_b32 s13, {sW}, 8\ns_add_u32 s12, s12, s13\ns_lshl_b32 s12, s12, 7\ns_add_u32 s12, s12, {FL_LN}')
a(f'v_lshl_add_u32 {vFU}, {vL}, 9, s12')
a(f's_mul_i32 s12, {sW}, 176\ns_add_u32 s12, s12, {sCT2}\ns_lshl_b32 s12, s12, 7\ns_add_u32 s12, s12, {FL_LN}')
a(f'v_min_u32 v160, 21, {vL}\nv_lshl_add_u32 {vFW}, v160, 10, s12')
a(f's_mul_i32 s14, {sW}, 11\ns_mul_i32 s14, s14, 21846\ns_lshr_b32 s14, s14, 16')
a(f's_lshr_b32 s12, {sRT2}, 1\ns_lshl_b32 s12, s12, 6\ns_and_b32 s13, {sRT2}, 1\ns_lshl_b32 s13, s13, 1\ns_add_u32 s12, s12, s13\ns_lshl_b32 s12, s12, 7\ns_add_u32 s12, s12, {FL_H}')
a(f'v_lshrrev_b32 v160, 1, {vL}\nv_min_u32 v160, 4, v160\nv_add_u32 v160, s14, v160\nv_min_u32 v160, 14, v160\nv_lshlrev_b32 v160, 2, v160\nv_and_b32 v161, 1, {vL}\nv_add_u32 v160, v160, v161\nv_lshl_add_u32 {vFH}, v160, 7, s12')
a(f's_lshl_b32 s12, {sCT2}, 7\ns_lshr_b32 s13, {sRT2}, 4\ns_add_u32 s12, s12, s13\ns_lshl_b32 s12, s12, 7\ns_add_u32 s12, s12, {FL_S}\nv_lshl_add_u32 {vFS}, {vL}, 8, s12')
a(f'v_lshlrev_b32 {vUG}, 13, {vL}\ns_lshl_b32 s12, {sW}, 10\ns_sub_u32 s12, {L_UT+255*16}, s12\nv_sub_u32 {vUL}, s12, {v16}')
a(f'v_mov_b32 v{ONES}, 0x3f80\nv_mov_b32 v{ONES+1}, 0\nv_mov_b32 v{ONES+2}, 0\nv_mov_b32 v{ONES+3}, 0')
a(f's_lshl_b32 s12, {sRT1}, 2\ns_add_u32 s12, s12, {sW}\ns_lshl_b32 {sXA}, s12, 15')
a(f's_mul_i32 s12, s12, 86\ns_mul_i32 s13, {sCG}, 6\ns_add_u32 s12, s12, s13\ns_lshl_b32 s12, s12, 10\ns_add_u32 {sHST}, s12, {HH}')
a(f's_mul_i32 s12, {sCT2}, 88\ns_mul_i32 s13, {sW}, 22\ns_add_u32 s12, s12, s13\ns_lshl_b32 s12, s12, 11\ns_add_u32 {sW2A}, s12, {W2T}')
a(f's_lshl_b32 s12, {sRT2}, 1\ns_add_u32 s14, s12, {sWH}\ns_xor_b32 s13, s14, 1\ns_mul_i32 s14, s14, 86\ns_mul_i32 s13, s13, 86\ns_mul_i32 s12, {sW}, 22')
a(f's_add_u32 s14, s14, s12\ns_add_u32 s13, s13, s12\ns_lshl_b32 s14, s14, 10\ns_lshl_b32 s13, s13, 10\ns_add_u32 {sHA0}, s14, {HH}\ns_add_u32 {sHA1}, s13, {HH}')
a(f's_lshl_b32 s12, {sRT1}, 4\ns_add_u32 s12, s12, {sCG}\ns_lshl_b32 s12, s12, 2\ns_add_u32 s12, s12, {sW}\ns_lshl_b32 s12, s12, 7\ns_add_u32 {sFH}, s12, {FL_H}')
a(f's_lshl_b32 s12, {sBPP}, 2\ns_add_u32 s12, s12, {sW}\ns_lshl_b32 s12, s12, 7\ns_add_u32 {sFS}, s12, {FL_S}')
a(f's_lshl_b32 s13, {sBPP}, 1\ns_add_u32 s12, {sWH}, s13\ns_lshl_b32 s12, s12, 4\ns_lshl_b32 s13, {sW1}, 20\ns_add_u32 s12, s12, s13\ns_add_u32 {sSST}, s12, {SB}')
a(f's_lshl_b32 s12, {sW}, 19\ns_lshl_b32 s13, {sBPP}, 5\ns_add_u32 s12, s12, s13\ns_add_u32 {sUA}, s12, {UB}')
a(f's_lshl_b32 s12, {sRT2}, 3\ns_add_u32 s12, s12, {sW}\ns_lshl_b32 s12, s12, 13\ns_lshl_b32 s13, {sCT2}, 10\ns_add_u32 s12, s12, s13\ns_add_u32 {sSA}, s12, {SB}')
a(f's_lshl_b32 s12, {sRT2}, 16\ns_lshl_b32 s13, {sWH}, 15\ns_add_u32 s12, s12, s13\ns_add_u32 {sXO}, s12, s36')
a(f's_mul_i32 s12, {sW}, 2080\ns_add_u32 s12, s12, {L_LNS}\nv_add_u32 v168, s12, {v16}')
a(f'v_and_b32 v160, 7, v0\nv_lshrrev_b32 v161, 3, v0\nv_mul_u32_u24 v169, 1040, v160\nv_lshl_add_u32 v169, v161, 4, v169\nv_add_u32 v169, {L_LNS}, v169')
a('v_lshlrev_b32 v161, 9, v161\nv_lshl_add_u32 v170, v160, 4, v161')
a(f'v_bfe_u32 v171, v0, 2, 2\nv_sub_u32 v171, 3, v171\nv_mul_u32_u24 v171, 1040, v171')
a(f'v_and_b32 v160, 3, v0\nv_lshlrev_b32 v160, 3, v160\nv_and_b32 v161, 0xf0, v0\nv_lshl_add_u32 v160, v161, 1, v160\nv_add_u32 v171, v171, v160\nv_add_u32 v171, {L_LNS}, v171')
a('v_lshlrev_b32 v172, 4, v0')
a(f'v_lshrrev_b32 v160, 5, {vL}\nv_bfe_u32 v161, {vL}, 2, 2\nv_lshl_add_u32 v160, v160, 2, v161\nv_lshlrev_b32 v160, 7, v160')
a(f'v_bfe_u32 v161, {vL}, 4, 1\nv_lshlrev_b32 v161, 1, v161\nv_bfe_u32 v162, {vL}, 1, 1\nv_add_u32 v161, v161, v162\nv_bfe_u32 v162, {vL}, 3, 1\nv_lshlrev_b32 v162, 2, v162\nv_xor_b32 v161, v161, v162')
a(f'v_lshl_add_u32 v160, v161, 4, v160\nv_and_b32 v161, 1, {vL}\nv_lshl_add_u32 v160, v161, 3, v160')
a(f's_lshl_b32 s12, {sW}, 11\ns_add_u32 s12, s12, {L_TAB}\nv_add_u32 v173, s12, v160\nv_xor_b32 v174, 64, v173')
stamp('precomp')

a('s_mov_b32 s12, 0x3f803f80')
A0 = 176
for k in range(4):
    for r in range(2):
        x = f'v{XR+4*r+k}'; sa, sq = A0 + r, A0 + 2 + r
        a(f'v_dot2_f32_bf16 v{sa}, {x}, s12, {"0" if k == 0 else f"v{sa}"}')
        a(f'v_dot2_f32_bf16 v{sq}, {x}, {x}, {"0" if k == 0 else f"v{sq}"}')
stamp('xarrive')
for mod in ['row_shr:1 row_mask:0xf bank_mask:0xf bound_ctrl:0', 'row_shr:2 row_mask:0xf bank_mask:0xf bound_ctrl:0',
            'row_shr:4 row_mask:0xf bank_mask:0xf bound_ctrl:0', 'row_shr:8 row_mask:0xf bank_mask:0xf bound_ctrl:0',
            'row_bcast:15 row_mask:0xa bank_mask:0xf', 'row_bcast:31 row_mask:0xc bank_mask:0xf']:
    for r in range(A0, A0 + 4): a(f'v_add_f32_dpp v{r}, v{r}, v{r} {mod}')
for r in range(4): a(f'v_readlane_b32 s{12+r}, v{A0+r}, 63')
a(f'v_mov_b32 v180, {fbits(1/512)}')
for r in range(4): a(f'v_mul_f32 v{A0+r}, s{12+r}, v180')
M, Q = vr(A0, 2), vr(A0 + 2, 2)
a(f'v_pk_fma_f32 {Q}, {M}, {M}, {Q} neg_lo:[1,0,0] neg_hi:[1,0,0]')
a(f'v_max_f32 v{A0+2}, 0, v{A0+2}\nv_max_f32 v{A0+3}, 0, v{A0+3}')
def rnd2(lo, hi, t): a(f'v_cvt_pk_bf16_f32 {t}, {lo}, {hi}\nv_lshlrev_b32 {lo}, 16, {t}\nv_and_b32 {hi}, 0xffff0000, {t}')
q0, q1 = f'v{A0+2}', f'v{A0+3}'
rnd2(q0, q1, 'v181'); rnd2(f'v{A0}', f'v{A0+1}', 'v180')
a(f'v_add_f32 {q0}, {fbits(1e-5)}, {q0}\nv_add_f32 {q1}, {fbits(1e-5)}, {q1}')
rnd2(q0, q1, 'v181')
a(f'v_sqrt_f32 {q0}, {q0}\nv_sqrt_f32 {q1}, {q1}')
rnd2(q0, q1, 'v181')
a(f'v_rcp_f32 {q0}, {q0}\nv_rcp_f32 {q1}, {q1}')
a(f'v_readfirstlane_b32 {sTAG}, v167')
a(f'v_pk_mul_f32 {M}, {M}, {Q} neg_lo:[1,0] neg_hi:[1,0]')
a(f's_mul_i32 {sTAG}, {sTAG}, 0x9E3779B1\ns_add_u32 {sTAG}, {sTAG}, 0x7F4A7C15')
for r in range(2):
    sel = 'op_sel:[0,0,0] op_sel_hi:[1,0,0]' if r == 0 else 'op_sel:[0,1,1] op_sel_hi:[1,1,1]'
    for k in range(4):
        x = f'v{XR+4*r+k}'; t = 182 + 2 * k
        a(f'v_lshlrev_b32 v{t}, 16, {x}\nv_and_b32 v{t+1}, 0xffff0000, {x}')
    for k in range(4):
        t = 182 + 2 * k; a(f'v_pk_fma_f32 {vr(t, 2)}, {vr(t, 2)}, {Q}, {M} {sel}')
    for k in range(4):
        t = 182 + 2 * k; a(f'v_cvt_pk_bf16_f32 v{XR+4*r+k}, v{t}, v{t+1}')
    a(f'ds_write_b128 v168, {vr(XR+4*r, 4)} offset:{1040*r}')
a.wait_vm('w2u')
for sl, base in enumerate(['v173', 'v174']):
    for q in range(2): a(f'ds_read_b64_tr_b16 {vr(192+4*sl+2*q, 2)}, {base} offset:{q*1024}')
stamp('lncomp')
a.barrier()
a('ds_read_b128 v[176:179], v169\nds_read_b128 v[180:183], v169 offset:512')
a('ds_read_b64_tr_b16 v[184:185], v171 offset:4160\nds_read_b64_tr_b16 v[186:187], v171')
a('ds_read_b64_tr_b16 v[188:189], v171 offset:4672\nds_read_b64_tr_b16 v[190:191], v171 offset:512')
a(f's_and_b32 s12, s37, 7\ns_mul_i32 s12, s12, 88\ns_lshr_b32 s13, s37, 3\ns_add_u32 s12, s12, s13\ns_lshl_b32 s12, s12, 11\ns_add_u32 s12, s12, {W2T}\ns_cmp_lt_u32 s37, 704\ns_cselect_b32 s14, s12, {DROP}')
a(f's_lshr_b32 s12, {sB}, 2\ns_lshl_b32 s12, s12, 15\ns_and_b32 s13, {sB}, 3\ns_lshl_b32 s13, s13, 7\ns_add_u32 s12, s12, s13\ns_add_u32 s13, s12, 16384')
a(f'buffer_store_dwordx4 v[176:179], v170, {WS_SRD}, s12 offen sc1', tag='ln')
a(f'buffer_store_dwordx4 v[180:183], v170, {WS_SRD}, s13 offen sc1', tag='ln')
a(f's_lshl_b32 s12, {sB}, 13\ns_add_u32 s12, s12, {UB}\ns_add_u32 s13, s12, 4096')
a(f'buffer_store_dwordx4 v[184:187], v172, {WS_SRD}, s12 offen sc1', tag='ln')
a(f'buffer_store_dwordx4 v[188:191], v172, {WS_SRD}, s13 offen sc1', tag='ln')
a(f'buffer_store_dwordx4 v[192:195], {v16}, {WS_SRD}, s14 offen sc1', tag='ln')
a(f'buffer_store_dwordx4 v[196:199], {v16}, {WS_SRD}, s14 offen offset:1024 sc1', tag='ln')
stamp('lnstores')

T = []
def cmul(d, x, y):
    T.append(L(f'v_pk_mul_f32 {vr(d,2)}, {vr(x,2)}, {vr(y,2)} op_sel:[0,0] op_sel_hi:[0,1]'))
    T.append(L(f'v_pk_fma_f32 {vr(d,2)}, {vr(x,2)}, {vr(y,2)}, {vr(d,2)} op_sel:[1,1,0] op_sel_hi:[1,0,1] neg_lo:[1,0,0]'))
for i in range(8): T.append(L(f'v_lshlrev_b32 v{PR+i}, 16, v{PR+i}'))
are, aim, bre, bim, cre, ldt, dsk = PR, PR+1, PR+2, PR+3, PR+4, PR+6, PR+7
T += lines(f'''v_mul_f32 v{ldt}, {fbits(1.4426950408889634)}, v{ldt}
v_exp_f32 v{ldt}, v{ldt}
v_cmp_eq_u32 vcc, 0, {vDS}
v_cvt_pk_bf16_f32 v{ldt}, v{ldt}, v{ldt}
v_lshlrev_b32 v{ldt}, 16, v{ldt}
v_cndmask_b32 {vDS}, 0, v{dsk}, vcc
v_mul_f32 v{are}, v{ldt}, v{are}
v_mul_f32 v{aim}, v{ldt}, v{aim}
v_mul_f32 v{bre}, v{ldt}, v{bre}
v_mul_f32 v{bim}, v{ldt}, v{bim}
v_mul_f32 v{are}, {fbits(1.4426950408889634)}, v{are}
v_mul_f32 v{aim}, {fbits(0.15915494309189535)}, v{aim}''')
G0, E1, E8, E256, E512, E1024, E32 = 160, 162, 164, 166, 168, 170, 172
cmul(G0, cre, bre)
ls = [(E1, 1.0), (E8, 8.0), (E256, 256.0)]
for i, (d, l) in enumerate(ls): T += lines(f'v_mul_f32 v{224+2*i}, {fbits(l)}, v{aim}\nv_mul_f32 v{225+2*i}, {fbits(l)}, v{are}')
for i, (d, l) in enumerate(ls): T += lines(f'v_fract_f32 v{224+2*i}, v{224+2*i}\nv_exp_f32 v{225+2*i}, v{225+2*i}')
for i, (d, l) in enumerate(ls): T += lines(f'v_cos_f32 v{d}, v{224+2*i}\nv_sin_f32 v{d+1}, v{224+2*i}')
for i, (d, l) in enumerate(ls): T += lines(f'v_mul_f32 v{d}, v{225+2*i}, v{d}\nv_mul_f32 v{d+1}, v{225+2*i}, v{d+1}')
tmpc = [224, 225, 226, 227]; tci = [0]
def put(row, x, neg):
    t = tmpc[tci[0] % 4]; tci[0] += 1
    T.append(L(f'v_cvt_pk_bf16_f32 v{t}, v{x}, {"-" if neg else ""}v{x+1}'))
    T.append(L(f'ds_write_b32 {vTW}, v{t} offset:{row*528}'))
T += lines(f'v_mov_b32 v228, 0x00003f80\nds_write_b32 {vTW}, v228')
Pa = [174, 176, 178, 180]; Pb = [182, 184, 186, 188]
cmul(Pa[2], E8, E8); put(1, E8, False)
cmul(E512, E256, E256); put(32, G0, True)
cmul(Pa[3], Pa[2], E8); cmul(E32, Pa[2], Pa[2]); put(2, Pa[2], False)
cmul(E1024, E512, E512)
cmul(Pb[1], E8, E32); put(3, Pa[3], False); cmul(Pb[2], Pa[2], E32); put(4, E32, False); cmul(Pb[3], Pa[3], E32)
put(5, Pb[1], False); put(6, Pb[2], False); put(7, Pb[3], False)
cur = [E32, Pb[1], Pb[2], Pb[3]]
G = {0: G0}; free = [190, 192, 194, 196, 198, 200, 202, 204, 206, 208, 210, 212, 214, 216, 218, 220, 222]
hi_jobs = []
def hj(h, src, e, row):
    def f():
        G[h] = free.pop(0); cmul(G[h], G[src], e); put(row, G[h], True)
        for dead in DEAD.get(h, []): free.append(G[dead])
    hi_jobs.append(f)
DEAD = {2: [1], 4: [3], 6: [5], 7: [7], 258: [258, 2], 262: [262, 6], 516: [516, 4], 772: [772, 260], 1280: [1280, 256], 1536: [1536, 512], 1792: [1792, 768]}
for h in range(1, 8): hj(h, h - 1, E1, 32 + h)
for i, h in enumerate([0, 2, 4, 6]): hj(256 + h, h, E256, 40 + i)
for i, (h, src) in enumerate([(512, 0), (516, 4), (768, 256), (772, 260)]): hj(h, src, E512, 44 + i)
for i, (h, src) in enumerate([(1024, 0), (1280, 256), (1536, 512), (1792, 768), (2048, 1024)]): hj(h, src, E1024, 48 + i)
for q in range(2, 8):
    dst = Pa if q % 2 == 0 else Pb
    for i in range(4):
        cmul(dst[i], cur[i], E32); put(4*q+i, dst[i], False)
        if hi_jobs: hi_jobs.pop(0)()
    cur = list(dst)
assert not hi_jobs
nT = len(T)
def pub_ln():
    stamp('pre_publn'); a.wait_vm('ln'); stamp('ln_landed'); publish(sFLN)
sides = spread(w1_items[NW1A:], 2, nT * opt('w1end', 90) / 100)
sides.append((nT * opt('publn', 55) / 100, pub_ln))
sides.append((nT - 1, lambda: poll_issue(vFX, vPT)))
weave(T, sides)
stamp('tables')
a.barrier()

xl_state = [0]
def xload():
    ks = xl_state[0]; xl_state[0] += 1
    a(f'buffer_load_dwordx4 {vr(32+4*ks, 4)}, {v16}, {WS_SRD}, {sXA} offen offset:{(ks % 4)*1024} sc1')
    if ks % 4 == 3: a(f's_add_u32 {sXA}, {sXA}, 4096')
Mn = []
def krd(kk):
    return [L(f'ds_read_b128 {ar(12*kk, 4)}, {vMA} offset:{32*528+64*kk}'), L(f'ds_read_b128 {ar(12*kk+8, 4)}, {vMB} offset:{64*kk}'), L(f'ds_read_b128 {ar(12*kk+4, 4)}, {vMA} offset:{48*528+64*kk}')]
def kmf(k2):
    return [L(f'v_mfma_f32_16x16x32_bf16 v[160:163], {ar(12*k2, 4)}, {ar(12*k2+8, 4)}, {"0" if k2 == 0 else "v[160:163]"}'),
            L(f'v_mfma_f32_16x16x32_bf16 v[164:167], {ar(12*k2+4, 4)}, {ar(12*k2+8, 4)}, {"0" if k2 == 0 else "v[164:167]"}')]
for kk in range(8):
    Mn += krd(kk)
    if kk >= 4: Mn += kmf(kk - 4)
for k2 in range(4, 8): Mn += kmf(k2)
Mn += lines(f'''v_mov_b32 v168, 0
v_mov_b32 v169, {sCTB}
ds_write_b32 v169, v168 offset:2048
v_add_f32 v160, v160, {vDS}
v_cvt_pk_bf16_f32 v162, v162, v163
v_cvt_pk_bf16_f32 v160, v160, v161
v_cvt_pk_bf16_f32 v164, v164, v165
v_cvt_pk_bf16_f32 v166, v166, v167
ds_write_b32 {vC0}, v160
ds_write_b32 {vC1}, v162
ds_write_b16 {vC2}, v164
ds_write_b16_d16_hi {vC2}, v164 offset:64
ds_write_b16 {vC2}, v166 offset:128
ds_write_b16_d16_hi {vC2}, v166 offset:192''')
NX1 = opt('nx1', 4); NX2 = opt('nx2', 8)
sides = [(opt('xchk', 24), lambda: poll_check(vFX, vPT))] + spread([xload] * NX1, opt('xchk', 24) + 1, len(Mn))
weave(Mn, sides)
a.wait_vm('w1')
stamp('kmfma')
a.barrier()
En = []
GB = 168
for it in range(8):
    for e in range(3): En.append(L(f'ds_read_u16 v{GB+3*it+e}, v{232+3*it+e}'))
En += lines(f'''v_mov_b32 v192, 0
v_mov_b32 v193, 0
v_mov_b32 v194, 0
v_mov_b32 v195, 0
v_lshrrev_b32 v196, 5, {vL}
v_mul_u32_u24 v196, {UTC}, v196
v_and_b32 v197, 31, {vL}
v_lshl_add_u32 v196, v197, 4, v196
v_add_u32 v196, {L_UT+4096}, v196
ds_write_b128 v196, v[192:195]''')
En.append(L(f'v_cmp_gt_u32 vcc, 7, {vTT}\ns_and_saveexec_b64 s[14:15], vcc\nds_write_b32 {vKW}, v192\nds_write_b32 {vKW}, v192 offset:{KTC}\ns_mov_b64 exec, s[14:15]'))
for it in range(8):
    b = GB + 3*it
    En += lines(f'v_lshl_or_b32 v{b}, v{b+1}, 16, v{b}\nv_lshl_or_b32 v{b+1}, v{b+2}, 16, v{b+1}\nds_write_b32 {vKW}, v{b} offset:{28+512*it}\nds_write_b32 {vKW}, v{b+1} offset:{KTC+28+512*it}')
def wread(ks, ct):
    base = vWA if ks < 16 else vWB; o = (ks % 16) * 3072; rb = 208 + 12 * (ks % 2)
    for q in range(2): a(f'ds_read_b64_tr_b16 {vr(rb+4*ct+2*q, 2)}, {base} offset:{o+768*q+64*ct}')
weave(En, spread([xload] * NX2, 0, len(En)))
for ct in range(3): wread(0, ct)
stamp('kgen_done')

Gm = []
for ct in range(3):
    Gm.append(L(f'v_mfma_f32_32x32x16_bf16 {vr(160+16*ct, 16)}, {ar(240+4*ct, 4)}, {vr(ONES, 4)}, 0'))
for ks in range(32):
    rb = 208 + 12 * (ks % 2)
    for ct in range(3):
        Gm.append(L(f'v_mfma_f32_32x32x16_bf16 {vr(160+16*ct, 16)}, {vr(rb+4*ct, 4)}, {vr(32+4*ks, 4)}, {vr(160+16*ct, 16)}'))
sides = []
for ks in range(1, 32):
    for ct in range(3):
        sides.append((3 + 3*(ks-1) + ct - 0.5 if False else 3 + 3*(ks-1) + ct - 1 + 0.1, (lambda ks=ks, ct=ct: wread(ks, ct))))
nrem = 32 - NX1 - NX2
for i in range(nrem): sides.append((3*i + 1.5, xload))
w2_state = [0]
p0 = 3 * nrem + 3
sides.append((p0, lambda: poll_issue(vFU, vPT)))
sides.append((p0 + 2, lambda: poll_issue(vFW, vPT2)))
UR = 232
def u_go():
    poll_check(vFU, vPT)
    a(f'buffer_load_dwordx4 {vr(UR, 4)}, {vUG}, {WS_SRD}, {sUA} offen sc1\nbuffer_load_dwordx4 {vr(UR+4, 4)}, {vUG}, {WS_SRD}, {sUA} offen offset:16 sc1')
def w2_go():
    poll_check(vFW, vPT2)
    a(f's_lshl_b32 s12, {sW1}, 10\nv_add_u32 v244, s12, {v16}\nv_xor_b32 v245, 0x400, v244')
pc = opt('g1chk', 80)
sides.append((pc, u_go)); sides.append((pc + 2, w2_go))
vW2a, vW2b = 'v244', 'v245'
def w2load():
    i = w2_state[0]; w2_state[0] += 1
    kk, sl = i // 2, i % 2
    a(f'buffer_load_dwordx4 {ar(8*kk+4*sl, 4)}, {vW2a if sl == 0 else vW2b}, {WS_SRD}, {sW2A} offen sc1')
    if sl: a(f's_add_u32 {sW2A}, {sW2A}, 2048')
for i in range(6): sides.append((pc + 4 + 2.5*i, w2load))
fill = lines(f'''s_mul_i32 s12, {sWH}, {2*KTC}
s_lshl_b32 s13, {sW1}, 8
s_add_u32 s12, s12, s13
s_add_u32 s12, s12, {L_KT}
v_and_b32 v246, 1, {vL}
v_mul_u32_u24 v246, {KTC}, v246
v_bfe_u32 v247, {vL}, 1, 3
v_lshl_add_u32 v246, v247, 2, v246
v_lshrrev_b32 v247, 4, {vL}
v_lshl_add_u32 v246, v247, 4, v246
v_add_u32 v7, s12, v246
v_add_u32 v8, 0x400, v7
v_add_u32 v9, 0x800, v7
v_add_u32 v10, 0xc00, v7
s_mul_i32 s12, {sWH}, {UTC}
s_add_u32 s12, s12, s13
s_add_u32 s12, s12, {L_UT+480}
v_and_b32 v246, 15, {vL}
v_lshlrev_b32 v246, 5, v246
v_lshlrev_b32 v247, 4, v247
v_sub_u32 v246, v247, v246
v_add_u32 {vUB_}, s12, v246
s_lshl_b32 s12, {sW}, 12
s_add_u32 s12, s12, {L_CX}
v_add_u32 {vCXW}, s12, {v16}
s_xor_b32 s13, {sW}, 1
s_lshl_b32 s13, s13, 12
s_add_u32 s13, s13, {L_CX}
v_add_u32 {vCXR}, s13, {v16}
v_and_b32 v246, 15, {vL}
v_lshlrev_b32 v246, 14, v246
v_lshrrev_b32 v247, 5, {vL}
v_lshl_add_u32 v246, v247, 13, v246
v_bfe_u32 v248, {vL}, 4, 1
v_lshl_add_u32 {vSG}, v248, 3, v246
v_and_b32 v246, 31, {vL}
v_lshlrev_b32 v246, 10, v246
v_lshl_add_u32 {vXG}, v247, 3, v246
s_mul_i32 s12, {sW}, 12288
s_add_u32 s12, s12, {L_RED}
v_add_u32 {vRR}, s12, {v16}
s_xor_b32 s12, {sW}, 1
s_mul_i32 s12, s12, 12288
s_add_u32 s12, s12, {L_RED}
v_add_u32 v{vRW[0]}, s12, {v16}
s_xor_b32 s12, {sW}, 2
s_mul_i32 s12, s12, 12288
s_add_u32 s12, s12, {L_RED+4096}
v_add_u32 v{vRW[1]}, s12, {v16}
s_xor_b32 s12, {sW}, 3
s_mul_i32 s12, s12, 12288
s_add_u32 s12, s12, {L_RED+8192}
v_add_u32 v{vRW[2]}, s12, {v16}
s_lshl_b32 s12, {sW}, 10
s_add_u32 s12, s12, {L_SST}
v_add_u32 {vSW}, s12, {v16}
v_lshlrev_b32 v246, 1, v248
v_bfe_u32 v248, {vL}, 1, 1
v_add_u32 v246, v246, v248
v_lshlrev_b32 v246, 10, v246
v_lshlrev_b32 v247, 2, v247
v_bfe_u32 v248, {vL}, 2, 2
v_add_u32 v247, v247, v248
v_lshl_add_u32 v246, v247, 4, v246
v_and_b32 v247, 1, {vL}
v_lshl_add_u32 v246, v247, 3, v246
s_lshl_b32 s12, {sWH}, 12
s_lshl_b32 s13, {sW1}, 9
s_add_u32 s12, s12, s13
s_add_u32 s12, s12, {L_SST}
v_add_u32 {vSR}, s12, v246''')
sides += spread(fill, 4, pc - 2)
sides.append((len(Gm) - 1.5, lambda: a(f'ds_write_b128 {vUL}, {vr(UR, 4)}\nds_write_b128 {vUL}, {vr(UR+4, 4)} offset:{UTC}')))
weave(Gm, sides)
stamp('gemm1')
a.barrier()

def conv_reads(rr):
    kb = 32 + 64 * (rr % 2); ub = kb + 32; out = []
    for q in range(8): out.append(L(f'ds_read_b128 {vr(ub+4*q, 4)}, {vUB_} offset:{3584-512*q+64*rr}'))
    for q in range(8):
        base = f'v{vK0 + q // 2}'; o = 16*rr + 128*(q % 2)
        out.append(L(f'ds_read2_b32 {vr(kb+4*q, 2)}, {base} offset0:{o} offset1:{o+1}'))
        out.append(L(f'ds_read2_b32 {vr(kb+4*q+2, 2)}, {base} offset0:{o+2} offset1:{o+3}'))
    return out
Ep = []
for ct in range(3):
    b = 160 + 16*ct
    Ep.append(L(f's_mul_i32 s13, {sCG}, 3\ns_add_u32 s13, s13, {ct}\ns_cmp_lt_u32 s13, 43\ns_cselect_b32 s14, {sHST}, {DROP}\ns_add_u32 {sHST}, {sHST}, 2048'))
    for hf in range(2):
        bb = b + 8 * hf
        for i in range(8): Ep.append(L(f'v_max_f32 v{bb+i}, 0, v{bb+i}'))
        for i in range(4): Ep.append(L(f'v_pk_mul_f32 {vr(bb+2*i, 2)}, {vr(bb+2*i, 2)}, {vr(bb+2*i, 2)}'))
        for i in range(4): Ep.append(L(f'v_cvt_pk_bf16_f32 v{bb+i}, v{bb+2*i}, v{bb+2*i+1}'))
        Ep.append(L(f'buffer_store_dwordx4 {vr(bb, 4)}, {v16}, {WS_SRD}, s14 offen offset:{1024*hf} sc1', tag='h'))
weave(Ep, spread(conv_reads(0), 0, len(Ep) - 10) + spread([w2load] * 4, 8, len(Ep)))
stamp('epi1')

CA = 208
Cm = []; sides = []
for rr in range(4):
    kb = 32 + 64 * (rr % 2); ub = kb + 32
    base = len(Cm)
    for q in range(8):
        for ct in range(q, 8):
            c = "0" if (rr == 0 and q == 0) else vr(CA+4*ct, 4)
            Cm.append(L(f'v_mfma_f32_16x16x32_bf16 {vr(CA+4*ct, 4)}, {vr(kb+4*q, 4)}, {vr(ub+4*(ct-q), 4)}, {c}'))
    if rr + 1 < 4: sides += spread(conv_reads(rr + 1), base, base + 34)
nw2 = 44 - w2_state[0]
sides += spread([w2load] * nw2, 1, opt('w2end', 120))
def pub_h():
    stamp('pre_pubh'); a.wait_vm('h'); stamp('h_landed'); publish(sFH)
sides.append((opt('pubh', 70), pub_h))
XE = 248
for q in range(4): sides.append((122 + 3*q, L(f'buffer_load_dwordx2 {vr(XE+2*q, 2)}, {vXG}, {X_SRD}, {sXO} offen offset:{16*q}')))
sides.append((opt('hpoll', 136), lambda: poll_issue(vFH, vPT)))
weave(Cm, sides)
stamp('conv')
h_state = [0]
def hreg(kk, sl):
    return ar(176 + 8*kk + 4*sl, 4) if kk < 8 else vr(32 + 8*(kk-8) + 4*sl, 4)
def hload():
    i = h_state[0]; h_state[0] += 1
    kk, sl = i // 2, i % 2
    sreg = sHA0 if sl == 0 else sHA1
    off = (kk % 4) * 1024
    if kk >= 20:
        a(f's_cmp_eq_u32 {sW}, 3\ns_cselect_b32 s12, 4096, 0\ns_sub_u32 s12, {sreg}, s12')
        a(f'buffer_load_dwordx4 {hreg(kk, sl)}, {v16}, {WS_SRD}, s12 offen offset:{off} sc1')
    else:
        a(f'buffer_load_dwordx4 {hreg(kk, sl)}, {v16}, {WS_SRD}, {sreg} offen offset:{off} sc1')
        if kk % 4 == 3: a(f's_add_u32 {sreg}, {sreg}, 4096')
a(f's_cmp_eq_u32 {sW1}, 0\ns_cbranch_scc0 L_cx1')
a.save('cx')
def cx(keep, send):
    for i in range(4): a(f'ds_write_b128 {vCXW}, {vr(send+4*i, 4)} offset:{1024*i}')
    a.barrier()
    for i in range(4): a(f'ds_read_b128 {vr(144+4*i, 4)}, {vCXR} offset:{1024*i}')
    for i in range(8): a(f'v_pk_add_f32 {vr(144+2*i, 2)}, {vr(144+2*i, 2)}, {vr(keep+2*i, 2)}')
cx(CA, CA + 16)
a('s_branch L_cx2')
a.save('cxa'); a.restore('cx')
a.label('L_cx1')
cx(CA + 16, CA)
a.label('L_cx2'); a.merge('cxa')
for i in range(8): a(f'v_cvt_pk_bf16_f32 v{144+i}, v{144+2*i}, v{145+2*i}')
for i in range(4):
    a(f'buffer_store_dwordx2 {vr(144+2*i, 2)}, {vSG}, {WS_SRD}, {sSST} offen sc1', tag='s')
    a(f's_add_u32 {sSST}, {sSST}, 0x40000')
poll_check(vFH, vPT)
NH1 = opt('nh1', 12)
for i in range(NH1): hload()
stamp('cx')

Gm = [L(f'v_mfma_f32_32x32x16_bf16 {vr(160, 16)}, {ar(252, 4)}, {vr(ONES, 4)}, 0')]
for kk in range(22):
    for s in range(4):
        c = "0" if (kk == 0 and s > 0) else vr(160+16*s, 16)
        Gm.append(L(f'v_mfma_f32_32x32x16_bf16 {vr(160+16*s, 16)}, {ar(8*kk+4*(s & 1), 4)}, {hreg(kk, s >> 1)}, {c}'))
sides = [(2*i + 0.5, hload) for i in range(44 - NH1)]
def pub_s():
    a.wait_vm('s'); publish(sFS)
sides.append((opt('pubs', 12), pub_s))
sides.append((opt('spoll', 66), lambda: poll_issue(vFS, vPT)))
SR = 224
def s_go():
    poll_check(vFS, vPT)
    a(f's_add_u32 s13, {sSA}, 32768')
    a(f'buffer_load_dwordx4 {vr(SR, 4)}, {v16}, {WS_SRD}, {sSA} offen sc1\nbuffer_load_dwordx4 {vr(SR+4, 4)}, {v16}, {WS_SRD}, s13 offen sc1')
sides.append((opt('schk', 78), s_go))
weave(Gm, sides)
stamp('gemm2')
for s in range(1, 4):
    for i in range(4): a(f'ds_write_b128 v{vRW[s-1]}, {vr(160+16*s+4*i, 4)} offset:{1024*i}')
a(f'ds_write_b128 {vSW}, {vr(SR, 4)}\nds_write_b128 {vSW}, {vr(SR+4, 4)} offset:4096')
def unp(dst, src): a(f'v_lshlrev_b32 v{dst}, 16, v{src}\nv_and_b32 v{dst+1}, 0xffff0000, v{src}')
for i in range(8): unp(112+2*i, XE+i)
a.barrier()
for i in range(12): a(f'ds_read_b128 {vr(64+4*i, 4)}, {vRR} offset:{1024*i}')
for q in range(4): a(f'ds_read_b64_tr_b16 {vr(56+2*q, 2)}, {vSR} offset:{128*q}')
for q in range(4):
    for s in range(3):
        for i in range(2): a(f'v_pk_add_f32 {vr(160+4*q+2*i, 2)}, {vr(160+4*q+2*i, 2)}, {vr(64+16*s+4*q+2*i, 2)}')
for i in range(16): a(f'v_mul_f32 v{64+i}, {fbits(-1.4426950408889634)}, v{160+i}')
for i in range(16): a(f'v_exp_f32 v{64+i}, v{64+i}')
for i in range(8): unp(80+2*i, 56+i)
for i in range(16): a(f'v_add_f32 v{64+i}, 1.0, v{64+i}')
for i in range(16): a(f'v_rcp_f32 v{64+i}, v{64+i}')
for i in range(8): a(f'v_pk_mul_f32 {vr(160+2*i, 2)}, {vr(160+2*i, 2)}, {vr(80+2*i, 2)}')
for q in range(4):
    for i in range(2*q, 2*q+2): a(f'v_pk_fma_f32 {vr(160+2*i, 2)}, {vr(160+2*i, 2)}, {vr(64+2*i, 2)}, {vr(112+2*i, 2)}')
    for i in range(2*q, 2*q+2): a(f'v_cvt_pk_bf16_f32 v{96+i}, v{160+2*i}, v{161+2*i}')
    a(f'buffer_store_dwordx2 {vr(96+2*q, 2)}, {vXG}, {OUT_SRD}, {sXO} offen offset:{16*q}')
a(f's_or_b32 s12, {sB}, {sW}\ns_cmp_eq_u32 s12, 0\ns_cbranch_scc0 L_fin')
a(f's_mov_b32 s12, {W0}')
publish('s12')
a.label('L_fin')
if PROF:
    stamp('end')
    a(f's_cmp_eq_u32 {sW}, 0\ns_cbranch_scc0 L_end')
    for k in range(20): a(f'v_mov_b32 v{32+k}, s{82+k}')
    a(f's_lshl_b32 s12, {sB}, 7\ns_add_u32 s12, s12, {PROFB}\nv_mov_b32 v22, 0\ns_mov_b64 exec, 1')
    for k in range(5): a(f'buffer_store_dwordx4 {vr(32+4*k, 4)}, v22, {WS_SRD}, s12 offen offset:{16*k}')
    open(OUT + '.names', 'w').write(','.join(names))
    if 'dbgwg' in OPT:
        a(f's_cmp_eq_u32 {sB}, {opt("dbgwg", 0)}\ns_cbranch_scc0 L_end')
        a('s_memrealtime s[80:81]'); a.wait_lg()
        n = len(names)
        sel = [0] + [i for i in range(1, n) if names[i] not in ('issued', 'xarrive', 'ln_landed', 'h_landed', 'kmfma')]
        for k, i in enumerate(sel[1:]):
            a(f's_sub_u32 s12, s{82+i}, s82\nv_mov_b32 v{32+k}, s12')
        a('s_sub_u32 s12, s80, s101\nv_mov_b32 v47, s12')
        print('dbg cols:', [names[i] for i in sel[1:]], '... v47=realtime')
        a('s_mov_b32 s44, s46\ns_mov_b32 s45, s47\ns_mov_b32 s46, 256\ns_mov_b32 s47, 0x00020000')
        for k in range(4): a(f'buffer_store_dwordx4 {vr(32+4*k, 4)}, v22, s[44:47], 0 offen offset:{16*k}')
a.label('L_end')
a.raw('  s_endpgm')
for k, (vaddr, vtmp) in enumerate(slow):
    a.raw(f'''L_spin{k}:
  s_mov_b32 s33, 0
L_spinl{k}:
  buffer_load_dword {vtmp}, {vaddr}, {WS_SRD}, 0 offen sc1
  s_add_u32 s33, s33, 1
  s_waitcnt vmcnt(0)
  v_cmp_ne_u32 vcc, {sTAG}, {vtmp}
  s_cbranch_vccz L_back{k}
  s_cmp_lt_u32 s33, 20000
  s_cbranch_scc1 L_spinl{k}
  s_branch L_back{k}''')

hdr = open(f'cdna_kernels/{NAME}.s.ref').read().split('; @launch')[0]
src = hdr + f"""; @launch grid=(256,1,1) block=(256,1,1) lds={LDS_BYTES}
.amdgcn_target "amdgcn-amd-amdhsa--gfx950"
.text
.globl {NAME}_kernel
.p2align 8
.type {NAME}_kernel,@function
{NAME}_kernel:
{a.text()}.section .rodata,"a"
.p2align 6
.amdhsa_kernel {NAME}_kernel
  .amdhsa_next_free_vgpr 512
  .amdhsa_next_free_sgpr 102
  .amdhsa_accum_offset 256
  .amdhsa_group_segment_fixed_size 0
  .amdhsa_kernarg_size 136
  .amdhsa_user_sgpr_count 2
  .amdhsa_user_sgpr_kernarg_segment_ptr 1
  .amdhsa_system_sgpr_workgroup_id_x 1
.end_amdhsa_kernel
"""
open(OUT, 'w').write(src)
print('instructions', a.ninst, 'auto nops', a.auto_nops, 'max vm', a.maxvm, '->', OUT)
```

```python
import sys, struct
sys.path.insert(0, 'gen')
from asmlib import Asm

NAME = "recurrent_scan__ssm_conv_s4__dense_activation_squared_relu__prompt"
PROF = '--prof' in sys.argv
OUT = [a for a in sys.argv[1:] if not a.startswith('--')]
OUT = OUT[0] if OUT else f'cdna_kernels/{NAME}.s'
OPT = dict(x.lstrip('-').split('=') for x in sys.argv[1:] if x.startswith('--') and '=' in x)
def opt(k, d): return int(OPT.get(k, d))
def fbits(x): return '0x%08x' % struct.unpack('<I', struct.pack('<f', x))[0]

XNF, SB, HH, W2T = 0x000000, 0x400000, 0x600000, 0xE00000
FL_LN, FL_H, FL_S, FL_W, W0 = 0xC00000, 0xC20000, 0xC40000, 0xC60000, 0xC80000
PROFB = 0xD00000
DROP = 0x70000000
L_TAB = 98304; TABC = 53 * 528
L_LNS = L_TAB + 2 * TABC
L_CT = L_LNS; CTC = 2080
L_KT = L_TAB; KTC = 4160
L_UT = L_KT + 4 * KTC; UTC = 4608
L_CX = L_UT + 2 * UTC
L_RED = 0
L_SST = 49152
LDS_BYTES = 163840
assert L_CX + 16384 <= L_LNS and L_LNS + 8 * 1040 <= LDS_BYTES

sB, sW, sXCD, sJ, sRT1, sCG, sBPP, sRT2, sCT2, sTAG = 's2', 's3', 's4', 's5', 's6', 's7', 's8', 's9', 's10', 's11'
sW1, sWH = 's50', 's51'
X_SRD, WS_SRD, W1_SRD, W2_SRD, OUT_SRD, B1_SRD, B2_SRD = 's[52:55]', 's[56:59]', 's[60:63]', 's[64:67]', 's[68:71]', 's[72:75]', 's[16:19]'
P = dict(x=16, are=18, aim=20, bre=22, bim=24, cre=26, cim=28, ldt=30, dsk=32, w1=36, b1=38, w2=40, b2=42, out=44, dbg=46, ws=48)
def ptr(n): return f's[{P[n]}:{P[n]+1}]'
(sW1G, sW1L, sW1N, sCTB, sXA, sW2A, sHA0, sHA1, sHST, sFLN, sFH, sFS, sSST, sUA, sSA, sXO,
 sU, sW1GB, sW1LB, sDO, sXS, sW2S, sFW, sXL) = ['s%d' % i for i in range(76, 100)]

a = Asm()
names = []
vST = 'v243'
def stamp(name=''):
    if PROF:
        k = len(names); names.append(name)
        a('s_memtime s[100:101]'); a.wait_lg(); a(f'v_writelane_b32 {vST}, s100, {k}')

def srd(dst, p, nbytes):
    d = int(dst[2:dst.index(':')])
    a(f's_mov_b32 s{d}, s{P[p]}\ns_mov_b32 s{d+1}, s{P[p]+1}\ns_mov_b32 s{d+2}, {nbytes}\ns_mov_b32 s{d+3}, 0x00020000')
def vr(b, n): return f'v[{b}:{b+n-1}]'
def ar(b, n): return f'a[{b}:{b+n-1}]'

slow = []
def poll_issue(vaddr, vtmp): a(f'buffer_load_dword {vtmp}, {vaddr}, {WS_SRD}, 0 offen sc1')
def poll_check(vaddr, vtmp):
    k = len(slow); slow.append((vaddr, vtmp))
    a(f'v_cmp_ne_u32 vcc, {sTAG}, {vtmp}')
    a(f's_cbranch_vccnz L_spin{k}')
    a.label(f'L_back{k}')
def publish(sflagoff):
    a('s_mov_b64 exec, 1')
    a(f'buffer_store_dword v5, v6, {WS_SRD}, {sflagoff} offen sc1')
    a('s_mov_b64 exec, -1')

def weave(main, sides):
    sides = sorted(enumerate(sides), key=lambda t: (t[1][0], t[0]))
    si = 0
    while si < len(sides) and sides[si][1][0] < 0:
        sides[si][1][1](); si += 1
    for i, m in enumerate(main):
        m()
        while si < len(sides) and sides[si][1][0] < i + 1:
            sides[si][1][1](); si += 1
    while si < len(sides):
        sides[si][1][1](); si += 1
def spread(items, lo, hi):
    n = len(items)
    return [(lo + (hi - lo) * i / n, f) for i, f in enumerate(items)]
def L(text, tag=None): return lambda: a(text, tag)
def lines(text): return [L(t) for t in text.strip().split('\n') if t.strip()]

vL, v16, vWA, vWB = 'v1', 'v2', 'v3', 'v4'
vTT, vTW, vMA, vMB, vC0, vC1, vC2, vKW, vDS = ['v%d' % i for i in range(10, 19)]
vFX, vFU, vFW, vFH, vFS, vPT, vPT2, vUG, vUL = ['v%d' % i for i in range(19, 28)]
ONES = 28
vK0, vUB_, vCXW, vCXR, vSG, vXG, vRR = 7, 'v11', 'v12', 'v13', 'v14', 'v15', 'v16'
vSR, vSW = 'v18', 'v0'
XR, PR = 208, 216
EXA = 232
exa = [r for r in range(231, 256) if r != 243]
WB = 208
NWS = 5

a('s_cmp_ge_u32 s2, 256\ns_cbranch_scc1 L_end')
a('s_load_dwordx16 s[16:31], s[0:1], 0\ns_load_dwordx16 s[32:47], s[0:1], 64\ns_load_dwordx2 s[48:49], s[0:1], 128')
a(f'v_and_b32 {vL}, 63, v0\nv_lshrrev_b32 v2, 6, v0\nv_readfirstlane_b32 {sW}, v2')
if opt('ipf', 1):
    a('s_getpc_b64 s[100:101]')
    a(f'v_lshlrev_b32 v160, 7, v0')
    a('global_load_dword v255, v160, s[100:101]')
a(f's_and_b32 {sXCD}, {sB}, 7\ns_lshr_b32 {sJ}, {sB}, 3')
a(f's_and_b32 s12, {sXCD}, 3\ns_lshl_b32 s12, s12, 2\ns_and_b32 s13, {sJ}, 3\ns_add_u32 {sRT1}, s12, s13')
a(f's_lshr_b32 s12, {sXCD}, 2\ns_lshl_b32 s12, s12, 3\ns_lshr_b32 {sCT2}, {sJ}, 2\ns_add_u32 {sCG}, s12, {sCT2}')
a(f's_lshl_b32 s12, {sXCD}, 5\ns_add_u32 {sBPP}, s12, {sJ}')
a(f's_lshl_b32 s12, {sXCD}, 2\ns_add_u32 {sRT2}, s12, s13')
a(f's_and_b32 {sW1}, {sW}, 1\ns_lshr_b32 {sWH}, {sW}, 1')
a(f'v_lshlrev_b32 {v16}, 4, {vL}')
a(f's_lshl_b32 s12, {sB}, 13\ns_lshl_b32 s13, {sW}, 11\ns_add_u32 {sXL}, s12, s13')
a(f's_lshl_b32 s13, {sBPP}, 1\ns_add_u32 s14, s13, {sWH}')
a(f's_lshl_b32 s12, {sW1}, 7\ns_lshl_b32 s13, s14, 8\ns_add_u32 s13, s13, s12')
a(f'v_lshl_add_u32 v162, {vL}, 1, s13')
a('s_lshl_b32 s13, s14, 1\nv_mov_b32 v163, s13')
a(f'v_mov_b32 v164, {W0}')
a(f'v_lshrrev_b32 v165, 3, {vL}\nv_lshlrev_b32 v165, 10, v165\nv_and_b32 v166, 7, {vL}\nv_bfe_u32 v167, {vL}, 4, 1\nv_lshlrev_b32 v167, 2, v167\nv_xor_b32 v166, v166, v167\nv_lshl_add_u32 v165, v166, 4, v165')
for t3 in range(3):
    a(f'v_add_u32 v166, {64*t3}, {vL}\nv_mul_u32_u24 v167, 5462, v166\nv_lshrrev_b32 v167, 16, v167')
    a(f'v_mul_u32_u24 v168, 12, v167\nv_sub_u32 v166, v166, v168\nv_lshlrev_b32 v166, 4, v166')
    a(f'v_mul_u32_u24 v167, 2752, v167\nv_add_u32 v{7+t3}, v167, v166')
a(f'v_lshlrev_b32 v166, 1, {vL}\nv_mov_b32 v167, 0x100000\nv_cmp_gt_u32 vcc, 32, {vL}\nv_cndmask_b32 v166, v167, v166, vcc')
a(f's_lshl_b32 {sU}, {sB}, 2\ns_add_u32 {sU}, {sU}, {sW}')
a(f's_and_b32 s12, {sRT1}, 3\ns_lshl_b32 {sW1N}, s12, 1')
a(f's_mul_i32 s12, {sW}, {128*2752}\ns_mul_i32 s13, {sCG}, 192\ns_add_u32 {sW1GB}, s12, s13\ns_mul_i32 {sW1LB}, {sW}, {24*1024}')
a(f's_lshl_b32 s12, {sCT2}, 7\ns_lshl_b32 s13, {sW1}, 6\ns_add_u32 {sDO}, s12, s13')
a(f's_lshr_b32 s12, {sU}, 3\ns_lshl_b32 s12, s12, 14\ns_and_b32 s13, {sU}, 7\ns_lshl_b32 s13, s13, 7\ns_add_u32 s14, s12, s13\ns_add_u32 s15, s14, 8192')
a(f's_mul_i32 s12, {sW}, 2080\ns_add_u32 s12, s12, {L_LNS}\nv_add_u32 v168, s12, {v16}')
a(f'v_and_b32 v171, 7, v0\nv_lshrrev_b32 v172, 3, v0\nv_mul_u32_u24 v169, 1040, v171\nv_lshl_add_u32 v169, v172, 4, v169\nv_add_u32 v169, {L_LNS}, v169')
a('v_lshlrev_b32 v172, 9, v172\nv_lshl_add_u32 v170, v171, 4, v172')
a(f's_lshr_b32 s12, {sB}, 2\ns_lshl_b32 s12, s12, 15\ns_and_b32 s13, {sB}, 3\ns_lshl_b32 s13, s13, 7\ns_add_u32 {sXS}, s12, s13')
for i in range(16): a(f'v_accvgpr_write_b32 a{240+i}, 0')
a.wait_lg()
stamp('kernarg')
srd(X_SRD, 'x', 2048*512*2)
a(f'buffer_load_dwordx4 {vr(XR, 4)}, {v16}, {X_SRD}, {sXL} offen')
a(f'buffer_load_dwordx4 {vr(XR+4, 4)}, {v16}, {X_SRD}, {sXL} offen offset:1024')
srd(WS_SRD, 'ws', 0x10000000)
a(f'buffer_load_dword v5, v164, {WS_SRD}, 0 offen sc1')
for i, n in enumerate(['are', 'aim', 'bre', 'bim', 'cre', 'cim']):
    a(f'global_load_ushort v{PR+i}, v162, {ptr(n)}')
a(f'global_load_ushort v{PR+6}, v163, {ptr("ldt")}\nglobal_load_ushort v{PR+7}, v163, {ptr("dsk")}')
srd(W1_SRD, 'w1', 512*1376*2)
def w1_one(t3):
    def f():
        if t3 == 0:
            a(f's_mul_i32 {sW1G}, {sW1N}, {16*2752}\ns_add_u32 {sW1G}, {sW1G}, {sW1GB}\ns_mul_i32 {sW1L}, {sW1N}, 3072\ns_add_u32 {sW1L}, {sW1L}, {sW1LB}')
            a(f's_add_u32 {sW1N}, {sW1N}, 1\ns_and_b32 {sW1N}, {sW1N}, 7')
        a(f's_mov_b32 m0, {sW1L}\ns_add_u32 {sW1L}, {sW1L}, 1024')
        a(f'buffer_load_dwordx4 v{7+t3}, {W1_SRD}, {sW1G} offen lds', tag='w1')
    return f
w1_items = [w1_one(t3) for g in range(8) for t3 in range(3)]
NW1A = opt('nw1a', 6)
for f in w1_items[:NW1A]: f()
srd(W2_SRD, 'w2', 1376*512*2)
a(f's_lshl_b32 s12, {sW}, 11\ns_add_u32 s12, s12, {L_TAB}\ns_mov_b32 m0, s12\ns_add_u32 s12, s12, 1024')
a(f'buffer_load_dwordx4 v165, {W2_SRD}, s14 offen lds', tag='w2u')
a('s_mov_b32 m0, s12')
a(f'buffer_load_dwordx4 v165, {W2_SRD}, s15 offen lds', tag='w2u')
srd(B1_SRD, 'b1', 1376*2)
a(f's_mul_i32 s12, {sCG}, 192')
for ct in range(3): a(f'buffer_load_ushort a{240+4*ct}, v166, {B1_SRD}, s12 offen offset:{64*ct}')
srd(B2_SRD, 'b2', 1024)
a(f'buffer_load_ushort a252, v166, {B2_SRD}, {sDO} offen')
srd(OUT_SRD, 'out', 2048*512*2)
stamp('issued')

a(f'v_lshrrev_b32 v160, 5, {vL}\nv_bfe_u32 v161, {vL}, 2, 2\nv_lshl_add_u32 v160, v160, 2, v161\nv_lshlrev_b32 v160, 7, v160')
a(f'v_bfe_u32 v161, {vL}, 4, 1\nv_lshlrev_b32 v161, 1, v161\nv_bfe_u32 v162, {vL}, 1, 1\nv_add_u32 v161, v161, v162\nv_bfe_u32 v162, {vL}, 3, 1\nv_lshlrev_b32 v162, 2, v162\nv_xor_b32 v161, v161, v162')
a(f'v_lshl_add_u32 v160, v161, 4, v160\nv_and_b32 v161, 1, {vL}\nv_lshl_add_u32 v160, v161, 3, v160')
a(f's_lshl_b32 s12, {sW}, 11\ns_add_u32 s12, s12, {L_TAB}\nv_add_u32 v173, s12, v160\nv_xor_b32 v174, 64, v173')
a(f's_lshl_b32 {sFLN}, {sU}, 7\ns_add_u32 {sFW}, {sFLN}, {FL_W}\ns_add_u32 {sFLN}, {sFLN}, {FL_LN}')
a(f's_and_b32 s12, {sU}, 7\ns_mul_i32 s12, s12, 88\ns_lshr_b32 s13, {sU}, 3\ns_add_u32 s12, s12, s13\ns_lshl_b32 s12, s12, 11\ns_add_u32 s12, s12, {W2T}\ns_cmp_lt_u32 {sU}, 704\ns_cselect_b32 {sW2S}, s12, {DROP}')
a(f's_mul_i32 {sCTB}, {sWH}, {CTC}\ns_add_u32 {sCTB}, {sCTB}, {L_CT}')
a(f's_lshl_b32 s12, {sW1}, 6\nv_add_u32 {vTT}, s12, {vL}\nv_mov_b32 v6, 0')
a(f's_mul_i32 s12, {sWH}, {TABC}\ns_add_u32 s12, s12, {L_TAB}\nv_lshl_add_u32 {vTW}, {vTT}, 2, s12')
a(f'v_and_b32 v160, 15, {vL}\nv_lshrrev_b32 v161, 4, {vL}\nv_mul_u32_u24 {vMA}, 528, v160\nv_lshl_add_u32 {vMA}, v161, 4, {vMA}\nv_add_u32 {vMA}, s12, {vMA}')
a(f's_mul_i32 s13, {sW1}, {16*528}\nv_add_u32 {vMB}, s13, {vMA}')
a(f's_lshl_b32 s13, {sW1}, 4\nv_add_u32 v160, s13, v160')
a(f'v_lshlrev_b32 {vC0}, 3, v160\nv_lshl_add_u32 {vC0}, v161, 2, {vC0}')
a(f'v_lshlrev_b32 v162, 2, v160\nv_add_u32 v162, 0x100, v162\nv_cmp_eq_u32 vcc, 2, v161\nv_cndmask_b32 {vC0}, {vC0}, v162, vcc')
a(f'v_lshlrev_b32 v162, 1, v160\nv_add_u32 v162, 0x180, v162\nv_cmp_eq_u32 vcc, 3, v161\nv_cndmask_b32 {vC0}, {vC0}, v162, vcc')
a(f'v_mov_b32 v162, 2\nv_mov_b32 v163, 64\nv_cndmask_b32 v162, v162, v163, vcc\nv_add_u32 {vC1}, {vC0}, v162')
a(f'v_lshl_add_u32 {vC0}, {vC0}, 1, {sCTB}\nv_lshl_add_u32 {vC1}, {vC1}, 1, {sCTB}')
a(f'v_lshl_add_u32 {vC2}, v161, 7, v160\nv_add_u32 {vC2}, 0x200, {vC2}\nv_lshl_add_u32 {vC2}, {vC2}, 1, {sCTB}')
a(f'v_or_b32 {vDS}, v160, v161')
a(f's_lshl_b32 s12, {sRT1}, 6\ns_lshl_b32 s13, {sW}, 4\ns_add_u32 s12, s12, s13\ns_lshl_b32 s12, s12, 7\ns_add_u32 s12, s12, {FL_LN}')
a(f'v_and_b32 v160, 15, {vL}\nv_lshl_add_u32 {vFX}, v160, 7, s12')
a(f's_lshl_b32 s12, {sRT1}, 2\ns_add_u32 s12, s12, {sW}\ns_lshl_b32 {sXA}, s12, 15')
a(f's_mul_i32 s12, s12, 86\ns_mul_i32 s13, {sCG}, 6\ns_add_u32 s12, s12, s13\ns_lshl_b32 s12, s12, 10\ns_add_u32 {sHST}, s12, {HH}')
a(f'v_lshrrev_b32 v160, 5, {vL}\nv_bfe_u32 v161, {vL}, 2, 2\nv_lshl_add_u32 v160, v160, 3, v161\nv_mul_u32_u24 v160, 192, v160')
a(f'v_bfe_u32 v161, {vL}, 4, 1\nv_lshl_add_u32 v160, v161, 5, v160\nv_and_b32 v161, 3, {vL}\nv_lshl_add_u32 {vWA}, v161, 3, v160\nv_add_u32 {vWB}, 49152, {vWA}')
a(f'v_mov_b32 v{ONES}, 0x3f80\nv_mov_b32 v{ONES+1}, 0\nv_mov_b32 v{ONES+2}, 0\nv_mov_b32 v{ONES+3}, 0')
stamp('precomp')

a('s_mov_b32 s12, 0x3f803f80')
A0 = 176
for k in range(4):
    for r in range(2):
        x = f'v{XR+4*r+k}'; sa, sq = A0 + r, A0 + 2 + r
        a(f'v_dot2_f32_bf16 v{sa}, {x}, s12, {"0" if k == 0 else f"v{sa}"}')
        a(f'v_dot2_f32_bf16 v{sq}, {x}, {x}, {"0" if k == 0 else f"v{sq}"}')
stamp('xarrive')
unp_items = []
for r in range(2):
    for k in range(4):
        x = f'v{XR+4*r+k}'; t = 184 + 8*r + 2*k
        unp_items += lines(f'v_lshlrev_b32 v{t}, 16, {x}\nv_and_b32 v{t+1}, 0xffff0000, {x}')
for mod in ['row_shr:1 row_mask:0xf bank_mask:0xf bound_ctrl:0', 'row_shr:2 row_mask:0xf bank_mask:0xf bound_ctrl:0',
            'row_shr:4 row_mask:0xf bank_mask:0xf bound_ctrl:0', 'row_shr:8 row_mask:0xf bank_mask:0xf bound_ctrl:0',
            'row_bcast:15 row_mask:0xa bank_mask:0xf', 'row_bcast:31 row_mask:0xc bank_mask:0xf']:
    for r in range(A0, A0 + 4): a(f'v_add_f32_dpp v{r}, v{r}, v{r} {mod}')
M, Q = vr(A0, 2), vr(A0 + 2, 2); q0, q1, m0_, m1_ = f'v{A0+2}', f'v{A0+3}', f'v{A0}', f'v{A0+1}'
def rnd2(lo, hi, t): return lines(f'v_cvt_pk_bf16_f32 {t}, {lo}, {hi}\nv_lshlrev_b32 {lo}, 16, {t}\nv_and_b32 {hi}, 0xffff0000, {t}')
St = [L(f'v_readlane_b32 s{12+r}, v{A0+r}, 63') for r in range(4)] + [L(f'v_mov_b32 v180, {fbits(1/512)}')]
St += [L(f'v_mul_f32 v{A0+r}, s{12+r}, v180') for r in range(4)]
St += lines(f'v_pk_fma_f32 {Q}, {M}, {M}, {Q} neg_lo:[1,0,0] neg_hi:[1,0,0]\nv_max_f32 {q0}, 0, {q0}\nv_max_f32 {q1}, 0, {q1}')
St += rnd2(q0, q1, 'v181') + lines(f'v_add_f32 {q0}, {fbits(1e-5)}, {q0}\nv_add_f32 {q1}, {fbits(1e-5)}, {q1}') + rnd2(q0, q1, 'v181')
St += lines(f'v_sqrt_f32 {q0}, {q0}\nv_sqrt_f32 {q1}, {q1}') + rnd2(m0_, m1_, 'v180') + rnd2(q0, q1, 'v181')
St += lines(f'v_rcp_f32 {q0}, {q0}\nv_rcp_f32 {q1}, {q1}')
weave(St, spread(unp_items, 4, len(St)))
a(f'v_readfirstlane_b32 {sTAG}, v5')
a(f'v_pk_mul_f32 {M}, {M}, {Q} neg_lo:[1,0] neg_hi:[1,0]')
for r in range(2):
    sel = 'op_sel:[0,0,0] op_sel_hi:[1,0,0]' if r == 0 else 'op_sel:[0,1,1] op_sel_hi:[1,1,1]'
    for k in range(4):
        t = 184 + 8*r + 2*k; a(f'v_pk_fma_f32 {vr(t, 2)}, {vr(t, 2)}, {Q}, {M} {sel}')
    for k in range(4):
        t = 184 + 8*r + 2*k; a(f'v_cvt_pk_bf16_f32 v{XR+4*r+k}, v{t}, v{t+1}')
    a(f'ds_write_b128 v168, {vr(XR+4*r, 4)} offset:{1040*r}')
a(f's_mul_i32 {sTAG}, {sTAG}, 0x9E3779B1\ns_add_u32 {sTAG}, {sTAG}, 0x7F4A7C15\ns_add_u32 s13, {sXS}, 16384')
a.wait_vm('w2u')
W2R = 200
for sl, base in enumerate(['v173', 'v174']):
    for q in range(2): a(f'ds_read_b64_tr_b16 {vr(W2R+4*sl+2*q, 2)}, {base} offset:{q*1024}')
stamp('lncomp')
a.barrier()
a('ds_read_b128 v[176:179], v169\nds_read_b128 v[180:183], v169 offset:512')
a(f'v_mov_b32 v5, {sTAG}')
a(f'buffer_store_dwordx4 v[176:179], v170, {WS_SRD}, {sXS} offen sc1', tag='ln')
a(f'buffer_store_dwordx4 v[180:183], v170, {WS_SRD}, s13 offen sc1', tag='ln')
stamp('lnstores')

T = []
def cmul(d, x, y):
    T.append(L(f'v_pk_mul_f32 {vr(d,2)}, {vr(x,2)}, {vr(y,2)} op_sel:[0,0] op_sel_hi:[0,1]'))
    T.append(L(f'v_pk_fma_f32 {vr(d,2)}, {vr(x,2)}, {vr(y,2)}, {vr(d,2)} op_sel:[1,1,0] op_sel_hi:[1,0,1] neg_lo:[1,0,0]'))
for i in range(8): T.append(L(f'v_lshlrev_b32 v{PR+i}, 16, v{PR+i}'))
are, aim, bre, bim, cre, ldt, dsk = PR, PR+1, PR+2, PR+3, PR+4, PR+6, PR+7
T += lines(f'''v_mul_f32 v{ldt}, {fbits(1.4426950408889634)}, v{ldt}
v_exp_f32 v{ldt}, v{ldt}
v_cmp_eq_u32 vcc, 0, {vDS}
v_cvt_pk_bf16_f32 v{ldt}, v{ldt}, v{ldt}
v_lshlrev_b32 v{ldt}, 16, v{ldt}
v_cndmask_b32 {vDS}, 0, v{dsk}, vcc
v_mul_f32 v{are}, v{ldt}, v{are}
v_mul_f32 v{aim}, v{ldt}, v{aim}
v_mul_f32 v{bre}, v{ldt}, v{bre}
v_mul_f32 v{bim}, v{ldt}, v{bim}
v_mul_f32 v{are}, {fbits(1.4426950408889634)}, v{are}
v_mul_f32 v{aim}, {fbits(0.15915494309189535)}, v{aim}''')
G0, E1, E8, E256, E512, E1024, E32 = 160, 162, 164, 166, 168, 170, 172
cmul(G0, cre, bre)
ls = [(E1, 1.0), (E8, 8.0), (E256, 256.0)]
for i, (d, l) in enumerate(ls): T += lines(f'v_mul_f32 v{224+2*i}, {fbits(l)}, v{aim}\nv_mul_f32 v{225+2*i}, {fbits(l)}, v{are}')
for i, (d, l) in enumerate(ls): T += lines(f'v_fract_f32 v{224+2*i}, v{224+2*i}\nv_exp_f32 v{225+2*i}, v{225+2*i}')
for i, (d, l) in enumerate(ls): T += lines(f'v_cos_f32 v{d}, v{224+2*i}\nv_sin_f32 v{d+1}, v{224+2*i}')
for i, (d, l) in enumerate(ls): T += lines(f'v_mul_f32 v{d}, v{225+2*i}, v{d}\nv_mul_f32 v{d+1}, v{225+2*i}, v{d+1}')
tmpc = [224, 225, 226, 227]; tci = [0]
def put(row, x, neg):
    t = tmpc[tci[0] % 4]; tci[0] += 1
    T.append(L(f'v_cvt_pk_bf16_f32 v{t}, v{x}, {"-" if neg else ""}v{x+1}'))
    T.append(L(f'ds_write_b32 {vTW}, v{t} offset:{row*528}'))
T += lines(f'ds_write_b32 {vTW}, v{ONES}')
Pa = [174, 176, 178, 180]; Pb = [182, 184, 186, 188]
cmul(Pa[2], E8, E8); put(1, E8, False)
cmul(E512, E256, E256); put(32, G0, True)
cmul(Pa[3], Pa[2], E8); cmul(E32, Pa[2], Pa[2]); put(2, Pa[2], False)
cmul(E1024, E512, E512)
cmul(Pb[1], E8, E32); put(3, Pa[3], False); cmul(Pb[2], Pa[2], E32); put(4, E32, False); cmul(Pb[3], Pa[3], E32)
put(5, Pb[1], False); put(6, Pb[2], False); put(7, Pb[3], False)
cur = [E32, Pb[1], Pb[2], Pb[3]]
G = {0: G0}; free = [190, 192, 194, 196, 198, 208, 210, 212, 214, 216, 218, 220, 222]
hi_jobs = []
DEAD = {2: [1], 4: [3], 6: [5], 7: [7], 258: [258, 2], 262: [262, 6], 516: [516, 4], 772: [772, 260], 1280: [1280, 256], 1536: [1536, 512], 1792: [1792, 768]}
def hj(h, src, e, row):
    def f():
        G[h] = free.pop(0); cmul(G[h], G[src], e); put(row, G[h], True)
        for dead in DEAD.get(h, []): free.append(G[dead])
    hi_jobs.append(f)
for h in range(1, 8): hj(h, h - 1, E1, 32 + h)
for i, h in enumerate([0, 2, 4, 6]): hj(256 + h, h, E256, 40 + i)
for i, (h, src) in enumerate([(512, 0), (516, 4), (768, 256), (772, 260)]): hj(h, src, E512, 44 + i)
for i, (h, src) in enumerate([(1024, 0), (1280, 256), (1536, 512), (1792, 768), (2048, 1024)]): hj(h, src, E1024, 48 + i)
for q in range(2, 8):
    dst = Pa if q % 2 == 0 else Pb
    for i in range(4):
        cmul(dst[i], cur[i], E32); put(4*q+i, dst[i], False)
        if hi_jobs: hi_jobs.pop(0)()
    cur = list(dst)
assert not hi_jobs
nT = len(T)
def pub_ln():
    stamp('pre_publn'); a.wait_vm('ln'); stamp('ln_landed'); publish(sFLN)
sides = spread(w1_items[NW1A:], nT * opt('w1beg', 5) / 100, nT * opt('w1end', 85) / 100)
sides.append((nT * opt('publn', 45) / 100, pub_ln))
sides.append((nT * opt('w2st', 60) / 100, L(f'buffer_store_dwordx4 {vr(W2R, 4)}, {v16}, {WS_SRD}, {sW2S} offen sc1', tag='w2s')))
sides.append((nT * opt('w2st', 60) / 100 + 20, L(f'buffer_store_dwordx4 {vr(W2R+4, 4)}, {v16}, {WS_SRD}, {sW2S} offen offset:1024 sc1', tag='w2s')))
sides.append((nT - 1, lambda: poll_issue(vFX, vPT)))
weave(T, sides)
stamp('tables')
a.barrier()

xl_state = [0]
def xload():
    ks = xl_state[0]; xl_state[0] += 1
    a(f'buffer_load_dwordx4 {vr(32+4*ks, 4)}, {v16}, {WS_SRD}, {sXA} offen offset:{(ks % 4)*1024} sc1')
    if ks % 4 == 3: a(f's_add_u32 {sXA}, {sXA}, 4096')
Mn = []
def krd(kk):
    return [L(f'ds_read_b128 {ar(12*kk, 4)}, {vMA} offset:{32*528+64*kk}'), L(f'ds_read_b128 {ar(12*kk+8, 4)}, {vMB} offset:{64*kk}'), L(f'ds_read_b128 {ar(12*kk+4, 4)}, {vMA} offset:{48*528+64*kk}')]
def kmf(k2):
    return [L(f'v_mfma_f32_16x16x32_bf16 v[160:163], {ar(12*k2, 4)}, {ar(12*k2+8, 4)}, {"0" if k2 == 0 else "v[160:163]"}'),
            L(f'v_mfma_f32_16x16x32_bf16 v[164:167], {ar(12*k2+4, 4)}, {ar(12*k2+8, 4)}, {"0" if k2 == 0 else "v[164:167]"}')]
for kk in range(8):
    Mn += krd(kk)
    if kk >= 4: Mn += kmf(kk - 4)
for k2 in range(4, 8): Mn += kmf(k2)
Mn += lines(f'''v_mov_b32 v169, {sCTB}
ds_write_b32 v169, v6 offset:2048
v_add_f32 v160, v160, {vDS}
v_cvt_pk_bf16_f32 v162, v162, v163
v_cvt_pk_bf16_f32 v160, v160, v161
v_cvt_pk_bf16_f32 v164, v164, v165
v_cvt_pk_bf16_f32 v166, v166, v167
ds_write_b32 {vC0}, v160
ds_write_b32 {vC1}, v162
ds_write_b16 {vC2}, v164
ds_write_b16_d16_hi {vC2}, v164 offset:64
ds_write_b16 {vC2}, v166 offset:128
ds_write_b16_d16_hi {vC2}, v166 offset:192''')
NX1 = opt('nx1', 8)
xc = opt('xchk', 12)
sides = [(xc, lambda: poll_check(vFX, vPT))] + spread([xload] * NX1, xc + 1, len(Mn))
weave(Mn, sides)
a.wait_vm('w1')
stamp('kmfma')
a.barrier()

order = [(ks, ct) for ks in range(16) for ct in range(3)] + [(ks, ct) for ct in range(3) for ks in range(16, 32)]
def wread(n):
    ks, ct = order[n]
    base = vWA if ks < 16 else vWB; o = (ks % 16) * 3072; rb = WB + 4 * (n % NWS)
    for q in range(2): a(f'ds_read_b64_tr_b16 {vr(rb+2*q, 2)}, {base} offset:{o+768*q+64*ct}')
LEAD = NWS - 1
for n in range(LEAD - 1): wread(n)
Gm = [L(f'v_mfma_f32_32x32x16_bf16 {vr(160+16*ct, 16)}, {ar(240+4*ct, 4)}, {vr(ONES, 4)}, 0') for ct in range(3)]
for n, (ks, ct) in enumerate(order):
    Gm.append(L(f'v_mfma_f32_32x32x16_bf16 {vr(160+16*ct, 16)}, {vr(WB+4*(n % NWS), 4)}, {vr(32+4*ks, 4)}, {vr(160+16*ct, 16)}'))
sides = []
for n in range(LEAD - 1, 96):
    sides.append((3 + n - LEAD + 0.1, (lambda n=n: wread(n))))
nrem = 32 - NX1
XSP = opt('xsp', 21) / 10
for i in range(nrem): sides.append((XSP*i + 0.5, xload))
fillA = lines(f'''s_mul_i32 s12, {sWH}, {2*KTC}
s_add_u32 s12, s12, {L_KT}
v_lshl_add_u32 {vKW}, {vTT}, 2, s12
v_lshlrev_b32 v228, 2, {vTT}
v_add_u32 v{exa[1]}, {sCTB}, v228
v_add_u32 v{exa[2]}, 2, v{exa[1]}
v_subrev_u32 v{exa[0]}, 2, v{exa[1]}''')
fillA.append(L(f'v_cmp_eq_u32 vcc, 0, {vTT}\nv_mov_b32 v228, {sCTB}\nv_add_u32 v228, 2048, v228\nv_cndmask_b32 v{exa[0]}, v{exa[0]}, v228, vcc'))
fillA += lines(f'v_lshlrev_b32 v228, 1, {vTT}\nv_cvt_f32_u32 v228, v228\ns_sub_u32 s14, {sCTB}, {2*(0x4300-128)}')
def gather(it): return [L(f'ds_read_u16 v{exa[3*it+e]}, v{exa[3*it+e]}') for e in range(3)]
def pack(it):
    b0, b1, b2 = exa[3*it], exa[3*it+1], exa[3*it+2]
    return lines(f'v_lshl_or_b32 v{b0}, v{b1}, 16, v{b0}\nv_lshl_or_b32 v{b1}, v{b2}, 16, v{b1}\nds_write_b32 {vKW}, v{b0} offset:{28+512*it}\nds_write_b32 {vKW}, v{b1} offset:{KTC+28+512*it}')
fillA += gather(0)
for it in range(1, 8):
    b0, b1, b2 = exa[3*it], exa[3*it+1], exa[3*it+2]
    fillA += lines(f'''v_add_f32 v{b0}, {fbits(256.0*it-1)}, v228
v_add_f32 v{b1}, {fbits(256.0*it)}, v228
v_add_f32 v{b2}, {fbits(256.0*it+1)}, v228
v_cvt_pk_bf16_f32 v{b1}, v{b0}, v{b1}
v_cvt_pk_bf16_f32 v{b2}, v{b2}, v{b2}
v_and_b32 v{b0}, 0xffff, v{b1}
v_lshrrev_b32 v{b1}, 16, v{b1}
v_lshrrev_b32 v{b2}, 16, v{b2}
v_lshl_add_u32 v{b0}, v{b0}, 1, s14
v_lshl_add_u32 v{b1}, v{b1}, 1, s14
v_lshl_add_u32 v{b2}, v{b2}, 1, s14''')
    fillA += gather(it) + pack(it - 1)
fillA += pack(7)
fillA += lines(f'''v_lshrrev_b32 v228, 5, {vL}
v_mul_u32_u24 v228, {UTC}, v228
v_and_b32 v229, 31, {vL}
v_lshl_add_u32 v228, v229, 4, v228
v_add_u32 v228, {L_UT+4096}, v228
ds_write_b64 v228, v[30:31]
ds_write_b64 v228, v[30:31] offset:8''')
fillA.append(L(f'v_cmp_gt_u32 vcc, 7, {vTT}\ns_and_saveexec_b64 s[14:15], vcc\nds_write_b32 {vKW}, v6\nds_write_b32 {vKW}, v6 offset:{KTC}\ns_mov_b64 exec, s[14:15]'))
fillU = lines(f'''s_lshr_b32 s12, {sBPP}, 5
s_and_b32 s12, s12, 3
s_lshl_b32 s13, {sW}, 8
s_add_u32 s12, s12, s13
s_lshl_b32 s12, s12, 7
s_add_u32 s12, s12, {FL_LN}
v_lshl_add_u32 {vFU}, {vL}, 9, s12
s_mul_i32 s12, {sW}, 176
s_add_u32 s12, s12, {sCT2}
s_lshl_b32 s12, s12, 7
s_add_u32 s12, s12, {FL_W}
v_min_u32 {vFW}, 21, {vL}
v_lshl_add_u32 {vFW}, {vFW}, 10, s12
v_lshrrev_b32 {vUG}, 5, {vL}
v_lshlrev_b32 {vUG}, 15, {vUG}
v_and_b32 {vUL}, 31, {vL}
v_lshl_add_u32 {vUG}, {vUL}, 4, {vUG}
s_lshl_b32 s12, {sW}, 19
s_lshr_b32 s13, {sBPP}, 2
s_lshl_b32 s13, s13, 9
s_add_u32 s12, s12, s13
s_and_b32 s13, {sBPP}, 3
s_lshl_b32 s13, s13, 2
s_add_u32 {sUA}, s12, s13
s_lshl_b32 s12, {sW}, 10
s_sub_u32 s12, {L_UT+4094-896}, s12
v_lshlrev_b32 {vUL}, 1, {vL}
v_sub_u32 {vUL}, s12, {vUL}
s_mul_i32 s12, {sCT2}, 88
s_mul_i32 s13, {sW}, 22
s_add_u32 s12, s12, s13
s_lshl_b32 s12, s12, 11
s_add_u32 {sW2A}, s12, {W2T}''')
sides += spread(fillU, 0, 10)
sides += spread(fillA, 10, opt('fillAend', 52))
def pub_w():
    a.wait_vm('w2s'); publish(sFW)
sides.append((2, pub_w))
pu = opt('upoll', 12)
sides.append((pu, lambda: poll_issue(vFU, vPT)))
UR = 130;
def u_go():
    poll_check(vFU, vPT)
    for i in range(8):
        a(f'buffer_load_dword a{232+i}, {vUG}, {WS_SRD}, {sUA} offen sc1')
        if i < 7: a(f's_add_u32 {sUA}, {sUA}, 65536')
sides.append((opt('uchk', 30), u_go))
uw = []
for i in range(8):
    uw += lines(f'ds_write_b16 {vUL}, a{232+i} offset:{896-128*i}\nds_write_b16_d16_hi {vUL}, a{232+i} offset:{UTC+896-128*i}')
sides += spread(uw, opt('uw', 56), opt('uw', 56) + 8)
sides.append((opt('wpoll', 44), lambda: poll_issue(vFW, vPT2)))
vW2a, vW2b = 'v244', 'v245'
def w2_go():
    poll_check(vFW, vPT2)
    a(f's_lshl_b32 s12, {sW1}, 10\nv_add_u32 {vW2a}, s12, {v16}\nv_xor_b32 {vW2b}, 0x400, {vW2a}')
wc = opt('wchk', 56)
sides.append((wc, w2_go))
w2_state = [0]
def w2load():
    i = w2_state[0]; w2_state[0] += 1
    kk, sl = i // 2, i % 2
    a(f'buffer_load_dwordx4 {ar(8*kk+4*sl, 4)}, {vW2a if sl == 0 else vW2b}, {WS_SRD}, {sW2A} offen sc1')
    if sl: a(f's_add_u32 {sW2A}, {sW2A}, 2048')
NW2G = opt('nw2g', 12)
sides += spread([w2load] * NW2G, wc + 1, 99)
fillB = lines(f'''s_mul_i32 s12, {sWH}, {2*KTC}
s_lshl_b32 s13, {sW1}, 8
s_add_u32 s12, s12, s13
s_add_u32 s12, s12, {L_KT}
v_and_b32 v231, 1, {vL}
v_mul_u32_u24 v231, {KTC}, v231
v_bfe_u32 v232, {vL}, 1, 3
v_lshl_add_u32 v231, v232, 2, v231
v_lshrrev_b32 v232, 4, {vL}
v_lshl_add_u32 v231, v232, 4, v231
v_add_u32 v7, s12, v231
v_add_u32 v8, 0x400, v7
v_add_u32 v9, 0x800, v7
v_add_u32 v10, 0xc00, v7
s_mul_i32 s12, {sWH}, {UTC}
s_add_u32 s12, s12, s13
s_add_u32 s12, s12, {L_UT+480}
v_and_b32 v231, 15, {vL}
v_lshlrev_b32 v231, 5, v231
v_lshlrev_b32 v232, 4, v232
v_sub_u32 v231, v232, v231
v_add_u32 {vUB_}, s12, v231
s_lshl_b32 s12, {sRT1}, 4
s_add_u32 s12, s12, {sCG}
s_lshl_b32 s12, s12, 2
s_add_u32 s12, s12, {sW}
s_lshl_b32 s12, s12, 7
s_add_u32 {sFH}, s12, {FL_H}''')
sides += spread(fillB, 57, 66)
BAR = opt('bar', 80)
sides.append((BAR, a.barrier))
def conv_reads(rr):
    kb = 32 + 64 * (rr % 2); ub = kb + 32; out = []
    for q in range(8): out.append(L(f'ds_read_b128 {vr(ub+4*q, 4)}, {vUB_} offset:{3584-512*q+64*rr}'))
    for q in range(8):
        base = f'v{vK0 + q // 2}'; o = 16*rr + 128*(q % 2)
        out.append(L(f'ds_read2_b32 {vr(kb+4*q, 2)}, {base} offset0:{o} offset1:{o+1}'))
        out.append(L(f'ds_read2_b32 {vr(kb+4*q+2, 2)}, {base} offset0:{o+2} offset1:{o+3}'))
    return out
sides += spread(conv_reads(0), BAR + 0.5, 98)
def epi1(ct):
    b = 160 + 16*ct; E = []
    E.append(L(f's_mul_i32 s13, {sCG}, 3\ns_add_u32 s13, s13, {ct}\ns_cmp_lt_u32 s13, 43\ns_cselect_b32 s15, {sHST}, {DROP}\ns_add_u32 {sHST}, {sHST}, 2048'))
    for hf in range(2):
        bb = b + 8 * hf
        for i in range(8): E.append(L(f'v_max_f32 v{bb+i}, 0, v{bb+i}'))
        for i in range(4): E.append(L(f'v_pk_mul_f32 {vr(bb+2*i, 2)}, {vr(bb+2*i, 2)}, {vr(bb+2*i, 2)}'))
        for i in range(4): E.append(L(f'v_cvt_pk_bf16_f32 v{bb+i}, v{bb+2*i}, v{bb+2*i+1}'))
        E.append(L(f'buffer_store_dwordx4 {vr(bb, 4)}, {v16}, {WS_SRD}, s15 offen offset:{1024*hf} sc1', tag='h'))
    return E
sides += spread(epi1(0), 3 + 64 + 2, 3 + 80)
sides += spread(epi1(1), 3 + 80 + 2, 3 + 96)
weave(Gm, sides)
stamp('gemm1')

CA = 208
Cm = []; sides = []
for rr in range(4):
    kb = 32 + 64 * (rr % 2); ub = kb + 32
    base = len(Cm)
    for q in range(8):
        for ct in range(q, 8):
            c = "0" if (rr == 0 and q == 0) else vr(CA+4*ct, 4)
            Cm.append(L(f'v_mfma_f32_16x16x32_bf16 {vr(CA+4*ct, 4)}, {vr(kb+4*q, 4)}, {vr(ub+4*(ct-q), 4)}, {c}'))
    if rr + 1 < 4: sides += spread(conv_reads(rr + 1), base + (10 if rr == 0 else 0), base + 34)
sides += spread(epi1(2), 2, 30)
nw2 = 44 - w2_state[0]
sides += spread([w2load] * nw2, 1, opt('w2end', 125))
vRW = [244, 245, 246]
fillC = lines(f'''s_lshl_b32 s12, {sW}, 12
s_add_u32 s12, s12, {L_CX}
v_add_u32 {vCXW}, s12, {v16}
s_xor_b32 s13, {sW}, 1
s_lshl_b32 s13, s13, 12
s_add_u32 s13, s13, {L_CX}
v_add_u32 {vCXR}, s13, {v16}
v_and_b32 v240, 15, {vL}
v_lshlrev_b32 v240, 14, v240
v_lshrrev_b32 v241, 5, {vL}
v_lshl_add_u32 v240, v241, 13, v240
v_bfe_u32 v242, {vL}, 4, 1
v_lshl_add_u32 {vSG}, v242, 3, v240
v_and_b32 v240, 31, {vL}
v_lshlrev_b32 v240, 10, v240
v_lshl_add_u32 {vXG}, v241, 3, v240
s_lshl_b32 s12, {sRT2}, 16
s_lshl_b32 s13, {sWH}, 15
s_add_u32 s12, s12, s13
s_add_u32 {sXO}, s12, {sDO}
s_mul_i32 s14, {sW}, 11
s_mul_i32 s14, s14, 21846
s_lshr_b32 s14, s14, 16
s_lshr_b32 s12, {sRT2}, 1
s_lshl_b32 s12, s12, 6
s_and_b32 s13, {sRT2}, 1
s_lshl_b32 s13, s13, 1
s_add_u32 s12, s12, s13
s_lshl_b32 s12, s12, 7
s_add_u32 s12, s12, {FL_H}
v_lshrrev_b32 v240, 1, {vL}
v_min_u32 v240, 4, v240
v_add_u32 v240, s14, v240
v_min_u32 v240, 14, v240
v_lshlrev_b32 v240, 2, v240
v_and_b32 {vFH}, 1, {vL}
v_add_u32 v240, v240, {vFH}
v_lshl_add_u32 {vFH}, v240, 7, s12
s_lshl_b32 s12, {sRT2}, 1
s_add_u32 s14, s12, {sWH}
s_xor_b32 s13, s14, 1
s_mul_i32 s14, s14, 86
s_mul_i32 s13, s13, 86
s_mul_i32 s12, {sW}, 22
s_add_u32 s14, s14, s12
s_add_u32 s13, s13, s12
s_lshl_b32 s14, s14, 10
s_lshl_b32 s13, s13, 10
s_add_u32 {sHA0}, s14, {HH}
s_add_u32 {sHA1}, s13, {HH}
s_lshl_b32 s13, {sBPP}, 1
s_add_u32 s12, {sWH}, s13
s_lshl_b32 s12, s12, 4
s_lshl_b32 s13, {sW1}, 20
s_add_u32 s12, s12, s13
s_add_u32 {sSST}, s12, {SB}
s_lshl_b32 s12, {sBPP}, 2
s_add_u32 s12, s12, {sW}
s_lshl_b32 s12, s12, 7
s_add_u32 {sFS}, s12, {FL_S}''')
sides += spread(fillC, 34, 100)
def pub_h():
    stamp('pre_pubh'); a.wait_vm('h'); stamp('h_landed'); publish(sFH)
sides.append((opt('pubh', 75), pub_h))
XE = 248
for q in range(4): sides.append((104 + 3*q, L(f'buffer_load_dwordx2 {vr(XE+2*q, 2)}, {vXG}, {X_SRD}, {sXO} offen offset:{16*q}')))
sides.append((opt('hpoll', 128), lambda: poll_issue(vFH, vPT)))
weave(Cm, sides)
stamp('conv')
h_state = [0]
def hreg(kk, sl): return ar(176 + 8*kk + 4*sl, 4) if kk < 8 else vr(32 + 8*(kk-8) + 4*sl, 4)
def hload():
    i = h_state[0]; h_state[0] += 1
    kk, sl = i // 2, i % 2
    sreg = sHA0 if sl == 0 else sHA1
    off = (kk % 4) * 1024
    if kk >= 20:
        a(f's_cmp_eq_u32 {sW}, 3\ns_cselect_b32 s12, 4096, 0\ns_sub_u32 s12, {sreg}, s12')
        a(f'buffer_load_dwordx4 {hreg(kk, sl)}, {v16}, {WS_SRD}, s12 offen offset:{off} sc1')
    else:
        a(f'buffer_load_dwordx4 {hreg(kk, sl)}, {v16}, {WS_SRD}, {sreg} offen offset:{off} sc1')
        if kk % 4 == 3: a(f's_add_u32 {sreg}, {sreg}, 4096')
poll_check(vFH, vPT)
stamp('hready')
NH0 = opt('nh0', 4); NH1 = opt('nh1', 8)
for i in range(NH0): hload()
a(f's_cmp_eq_u32 {sW1}, 0\ns_cbranch_scc0 L_cx1')
a.save('cx')
def cx(keep, send):
    for i in range(4): a(f'ds_write_b128 {vCXW}, {vr(send+4*i, 4)} offset:{1024*i}')
    a.barrier()
    for i in range(4): a(f'ds_read_b128 {vr(144+4*i, 4)}, {vCXR} offset:{1024*i}')
    for i in range(8): a(f'v_pk_add_f32 {vr(144+2*i, 2)}, {vr(144+2*i, 2)}, {vr(keep+2*i, 2)}')
cx(CA, CA + 16)
a('s_branch L_cx2')
a.save('cxa'); a.restore('cx')
a.label('L_cx1')
cx(CA + 16, CA)
a.label('L_cx2'); a.merge('cxa')
for i in range(NH1 - NH0): hload()
for i in range(8): a(f'v_cvt_pk_bf16_f32 v{144+i}, v{144+2*i}, v{145+2*i}')
sst = []
for i in range(4):
    sst.append(L(f'buffer_store_dwordx2 {vr(144+2*i, 2)}, {vSG}, {WS_SRD}, {sSST} offen sc1\ns_add_u32 {sSST}, {sSST}, 0x40000', tag='s'))
stamp('cx')

TAILK = opt('tailk', 3)
ord2 = [(kk, s) for kk in range(22 - TAILK) for s in range(4)] + [(kk, s) for s in (1, 2, 3, 0) for kk in range(22 - TAILK, 22)]
Gm = [L(f'v_mfma_f32_32x32x16_bf16 {vr(160, 16)}, {ar(252, 4)}, {vr(ONES, 4)}, 0')]
for kk, s in ord2:
    c = "0" if (kk == 0 and s > 0) else vr(160+16*s, 16)
    Gm.append(L(f'v_mfma_f32_32x32x16_bf16 {vr(160+16*s, 16)}, {ar(8*kk+4*(s & 1), 4)}, {hreg(kk, s >> 1)}, {c}'))
HSP = opt('hsp', 18) / 10
sides = [(HSP*i + 0.5, hload) for i in range(44 - NH1)]
sides += spread(sst, opt('sst0', 0), opt('sst1', 8))
fillD = lines(f'''s_lshl_b32 s14, {sCT2}, 7
s_lshr_b32 s13, {sRT2}, 4
s_add_u32 s14, s14, s13
s_lshl_b32 s14, s14, 7
s_add_u32 s14, s14, {FL_S}
v_lshl_add_u32 {vFS}, {vL}, 8, s14
s_lshl_b32 s14, {sRT2}, 3
s_add_u32 s14, s14, {sW}
s_lshl_b32 s14, s14, 13
s_lshl_b32 s13, {sCT2}, 10
s_add_u32 s14, s14, s13
s_add_u32 {sSA}, s14, {SB}
s_mul_i32 s14, {sW}, 12288
s_add_u32 s14, s14, {L_RED}
v_add_u32 {vRR}, s14, {v16}
s_xor_b32 s14, {sW}, 1
s_mul_i32 s14, s14, 12288
s_add_u32 s14, s14, {L_RED}
v_add_u32 v{vRW[0]}, s14, {v16}
s_xor_b32 s14, {sW}, 2
s_mul_i32 s14, s14, 12288
s_add_u32 s14, s14, {L_RED+4096}
v_add_u32 v{vRW[1]}, s14, {v16}
s_xor_b32 s14, {sW}, 3
s_mul_i32 s14, s14, 12288
s_add_u32 s14, s14, {L_RED+8192}
v_add_u32 v{vRW[2]}, s14, {v16}
s_lshl_b32 s14, {sW}, 10
s_add_u32 s14, s14, {L_SST}
v_add_u32 {vSW}, s14, {v16}
v_lshlrev_b32 v240, 1, v242
v_bfe_u32 v242, {vL}, 1, 1
v_add_u32 v240, v240, v242
v_lshlrev_b32 v240, 10, v240
v_lshlrev_b32 v241, 2, v241
v_bfe_u32 v242, {vL}, 2, 2
v_add_u32 v241, v241, v242
v_lshl_add_u32 v240, v241, 4, v240
v_and_b32 v241, 1, {vL}
v_lshl_add_u32 v240, v241, 3, v240
s_lshl_b32 s14, {sWH}, 12
s_lshl_b32 s13, {sW1}, 9
s_add_u32 s14, s14, s13
s_add_u32 s14, s14, {L_SST}
v_add_u32 {vSR}, s14, v240''')
sides += spread(fillD, 10, 40)
XU = 224
unx = []
for i in range(8): unx += lines(f'v_lshlrev_b32 v{XU+2*i}, 16, v{XE+i}\nv_and_b32 v{XU+2*i+1}, 0xffff0000, v{XE+i}')
sides += spread(unx, 42, 58)
def pub_s():
    a.wait_vm('s'); publish(sFS)
sides.append((opt('pubs', 36), pub_s))
sides.append((opt('spoll', 62), lambda: poll_issue(vFS, vPT)))
SR = XE
def s_go():
    poll_check(vFS, vPT)
    a(f's_add_u32 s13, {sSA}, 32768')
    a(f'buffer_load_dwordx4 {vr(SR, 4)}, {v16}, {WS_SRD}, {sSA} offen sc1\nbuffer_load_dwordx4 {vr(SR+4, 4)}, {v16}, {WS_SRD}, s13 offen sc1')
sides.append((opt('schk', 72), s_go))
nG = len(Gm)
for si, s in enumerate((1, 2)):
    end = nG - TAILK * (3 - si)
    sides += spread([L(f'ds_write_b128 v{vRW[s-1]}, {vr(160+16*s+4*i, 4)} offset:{1024*i}') for i in range(4)], end + 1.5, end + TAILK + 1.5)
weave(Gm, sides)
stamp('gemm2')
for i in range(4): a(f'ds_write_b128 v{vRW[2]}, {vr(160+48+4*i, 4)} offset:{1024*i}')
a(f'ds_write_b128 {vSW}, {vr(SR, 4)}\nds_write_b128 {vSW}, {vr(SR+4, 4)} offset:4096')
a.barrier()
stamp('redbar')
for q in range(4):
    for s in range(3): a(f'ds_read_b128 {vr(64+16*s+4*q, 4)}, {vRR} offset:{4096*s+1024*q}')
for q in range(4): a(f'ds_read_b64_tr_b16 {vr(56+2*q, 2)}, {vSR} offset:{128*q}')
for q in range(4):
    for s in range(3):
        for i in range(2): a(f'v_pk_add_f32 {vr(160+4*q+2*i, 2)}, {vr(160+4*q+2*i, 2)}, {vr(64+16*s+4*q+2*i, 2)}')
    for i in range(4*q, 4*q+4): a(f'v_mul_f32 v{112+i}, {fbits(-1.4426950408889634)}, v{160+i}')
    for i in range(4*q, 4*q+4): a(f'v_exp_f32 v{112+i}, v{112+i}')
def unp(dst, src): a(f'v_lshlrev_b32 v{dst}, 16, v{src}\nv_and_b32 v{dst+1}, 0xffff0000, v{src}')
for i in range(16): a(f'v_add_f32 v{112+i}, 1.0, v{112+i}')
for i in range(8):
    a(f'v_rcp_f32 v{112+2*i}, v{112+2*i}\nv_rcp_f32 v{113+2*i}, v{113+2*i}'); unp(128+2*i, 56+i)
for q in range(4):
    for i in range(2*q, 2*q+2): a(f'v_pk_mul_f32 {vr(160+2*i, 2)}, {vr(160+2*i, 2)}, {vr(128+2*i, 2)}')
    for i in range(2*q, 2*q+2): a(f'v_pk_fma_f32 {vr(160+2*i, 2)}, {vr(160+2*i, 2)}, {vr(112+2*i, 2)}, {vr(XU+2*i, 2)}')
    for i in range(2*q, 2*q+2): a(f'v_cvt_pk_bf16_f32 v{96+i}, v{160+2*i}, v{161+2*i}')
    a(f'buffer_store_dwordx2 {vr(96+2*q, 2)}, {vXG}, {OUT_SRD}, {sXO} offen offset:{16*q}')
a(f's_or_b32 s12, {sB}, {sW}\ns_cmp_eq_u32 s12, 0\ns_cbranch_scc0 L_fin')
a(f's_mov_b32 s12, {W0}')
publish('s12')
a.label('L_fin')
if PROF:
    stamp('end')
    a(f's_cmp_eq_u32 {sW}, 0\ns_cbranch_scc0 L_end')
    a(f's_lshl_b32 s12, {sB}, 8\ns_add_u32 s12, s12, {PROFB}\nv_lshlrev_b32 v22, 2, {vL}')
    a(f'buffer_store_dword {vST}, v22, {WS_SRD}, s12 offen')
    open(OUT + '.names', 'w').write(','.join(names))
a.label('L_end')
a.raw('  s_endpgm')
for k, (vaddr, vtmp) in enumerate(slow):
    a.raw(f'''L_spin{k}:
  s_mov_b32 s33, 0
L_spinl{k}:
  buffer_load_dword {vtmp}, {vaddr}, {WS_SRD}, 0 offen sc1
  s_add_u32 s33, s33, 1
  s_waitcnt vmcnt(0)
  v_cmp_ne_u32 vcc, {sTAG}, {vtmp}
  s_cbranch_vccz L_back{k}
  s_cmp_lt_u32 s33, 20000
  s_cbranch_scc1 L_spinl{k}
  s_branch L_back{k}''')
a.raw('  .fill 4096, 4, 0xbf800000' if opt('ipf', 1) else '')

hdr = open(f'cdna_kernels/{NAME}.s.ref').read().split('; @launch')[0]
src = hdr + f"""; @launch grid=(256,1,1) block=(256,1,1) lds={LDS_BYTES}
.amdgcn_target "amdgcn-amd-amdhsa--gfx950"
.text
.globl {NAME}_kernel
.p2align 8
.type {NAME}_kernel,@function
{NAME}_kernel:
{a.text()}.section .rodata,"a"
.p2align 6
.amdhsa_kernel {NAME}_kernel
  .amdhsa_next_free_vgpr 512
  .amdhsa_next_free_sgpr 102
  .amdhsa_accum_offset 256
  .amdhsa_group_segment_fixed_size 0
  .amdhsa_kernarg_size 136
  .amdhsa_user_sgpr_count 2
  .amdhsa_user_sgpr_kernarg_segment_ptr 1
  .amdhsa_system_sgpr_workgroup_id_x 1
.end_amdhsa_kernel
"""
open(OUT, 'w').write(src)
print('instructions', a.ninst, 'auto nops', a.auto_nops, 'max vm', a.maxvm, '->', OUT)
```

```python
import sys, struct
sys.path.insert(0, 'gen')
from asmlib import Asm

NAME = "recurrent_scan__ssm_conv_s4__dense_activation_squared_relu__prompt"
LITE = '--lite' in sys.argv
PROF = '--prof' in sys.argv or LITE
OUT = [a for a in sys.argv[1:] if not a.startswith('--')]
OUT = OUT[0] if OUT else f'cdna_kernels/{NAME}.s'
OPT = dict(x.lstrip('-').split('=') for x in sys.argv[1:] if x.startswith('--') and '=' in x)
def opt(k, d): return float(OPT[k]) if k in OPT else d
def fbits(x): return '0x%08x' % struct.unpack('<I', struct.pack('<f', x))[0]
LOG2E = 1.4426950408889634

XNF, SB, HH, W2T = 0x000000, 0x400000, 0x600000, 0xE00000
FL_LN, FL_H, FL_S, FL_W, W0 = 0xC00000, 0xC20000, 0xC40000, 0xC60000, 0xC80000
PROFB = 0xD00000
DROP = 0x70000000
L_TAB = 0; TABC = 53 * 528
L_W1 = 56320
L_LNS = L_W1 + 98304
L_CT = L_LNS; CTC = 2080
L_KT = 0; KTC = 4160
L_UT = 4 * KTC; UTC = 4608
L_CX = 32768
L_RED = 49152
L_SST = 98304
LDS_BYTES = 163840
assert 2 * TABC <= L_W1 and L_UT + 2 * UTC <= L_CX and L_LNS + 8 * 1040 <= LDS_BYTES

sB, sW, sXCD, sJ, sRT1, sCG, sBPP, sRT2, sCT2, sTAG = 's2', 's3', 's4', 's5', 's6', 's7', 's8', 's9', 's10', 's11'
sW1, sWH = 's50', 's51'
X_SRD, WS_SRD, W1_SRD, W2_SRD, OUT_SRD, B1_SRD, B2_SRD = 's[52:55]', 's[56:59]', 's[60:63]', 's[64:67]', 's[68:71]', 's[72:75]', 's[16:19]'
P = dict(x=16, are=18, aim=20, bre=22, bim=24, cre=26, cim=28, ldt=30, dsk=32, w1=36, b1=38, w2=40, b2=42, out=44, dbg=46, ws=48)
def ptr(n): return f's[{P[n]}:{P[n]+1}]'
(sW1G, sW1L, sW1N, sCTB, sXA, sW2A, sHA0, sHA1, sHST0, sFLN, sFH, sFS, sSST, sUA, sSA, sXO,
 sU, sW1GB, sW1LB, sDO, sXS, sW2S, sFW, sXL) = ['s%d' % i for i in range(76, 100)]
sTM, sKM, sHST1, sHST2, sW2UL, sSA1, sXS1 = 's20', 's21', 's22', 's23', 's24', 's25', 's26'

a = Asm()
names = []
vST = 'v243'
def stamp(name=''):
    if LITE:
        if name == 'end':
            names.append(name); a('s_memrealtime s[100:101]'); a.wait_lg(); a(f'v_writelane_b32 {vST}, s100, 1')
    elif PROF:
        k = len(names); names.append(name)
        a('s_memrealtime s[100:101]' if '--rt' in sys.argv else 's_memtime s[100:101]'); a.wait_lg(); a(f'v_writelane_b32 {vST}, s100, {k}')
def srd(dst, p, nbytes):
    d = int(dst[2:dst.index(':')])
    return f's_mov_b32 s{d}, s{P[p]}\ns_mov_b32 s{d+1}, s{P[p]+1}\ns_mov_b32 s{d+2}, {nbytes}\ns_mov_b32 s{d+3}, 0x00020000'
def vr(b, n): return f'v[{b}:{b+n-1}]'
def ar(b, n): return f'a[{b}:{b+n-1}]'
slow = []
def poll_issue(vaddr, vtmp): a(f'buffer_load_dword {vtmp}, {vaddr}, {WS_SRD}, 0 offen sc1')
def poll_check(vaddr, vtmp):
    k = len(slow); slow.append((vaddr, vtmp))
    a(f'v_cmp_ne_u32 vcc, {sTAG}, {vtmp}')
    a(f's_cbranch_vccnz L_spin{k}')
    a.label(f'L_back{k}')
def publish(sflagoff):
    a('s_mov_b64 exec, 1')
    a(f'buffer_store_dword v5, v6, {WS_SRD}, {sflagoff} offen sc1')
    a('s_mov_b64 exec, -1')
def weave(main, sides):
    sides = sorted(enumerate(sides), key=lambda t: (t[1][0], t[0]))
    si = 0
    while si < len(sides) and sides[si][1][0] < 0:
        sides[si][1][1](); si += 1
    for i, m in enumerate(main):
        m()
        while si < len(sides) and sides[si][1][0] < i + 1:
            sides[si][1][1](); si += 1
    while si < len(sides):
        sides[si][1][1](); si += 1
def spread(items, lo, hi):
    n = len(items)
    return [(lo + (hi - lo) * i / n, f) for i, f in enumerate(items)]
def L(text, tag=None): return lambda: a(text, tag)
def lines(text): return [L(t) for t in text.strip().split('\n') if t.strip()]

vL, v16, vWA, vWB = 'v1', 'v2', 'v3', 'v4'
vK0, vUB_, vMA, vMB, vC0, vC1, vC2, vDS, vFX, vFU, vFW, vFH, vFS, vPT, vPT2, vUG, vUL, vTT = ['v%d' % i for i in range(10, 28)]
ONES = 28
XR, PR = 208, 216
WB, NWS = 208, 6
EA = [232, 233, 234, 235, 236, 237, 238, 239, 240, 241, 242]
vSG, vXG, vW2a, vRR, vSL, vSW, vSR, vUZ = ['v%d' % i for i in range(244, 252)]

MAPB = int(opt('mapb', 0))
sT0, sT1 = 's12', 's13'

if PROF: a('s_memrealtime s[100:101]' if (LITE or '--rt' in sys.argv) else 's_memtime s[100:101]')
a('s_cmp_ge_u32 s2, 256\ns_cbranch_scc1 L_end')
a('s_load_dwordx16 s[16:31], s[0:1], 0\ns_load_dwordx16 s[32:47], s[0:1], 64\ns_load_dwordx2 s[48:49], s[0:1], 128')
a(f'''s_getpc_b64 s[12:13]
v_lshlrev_b32 v160, 7, v0
v_lshrrev_b32 v2, 6, v0
global_load_dword v255, v160, s[12:13]
v_readfirstlane_b32 {sW}, v2
v_and_b32 {vL}, 63, v0
s_and_b32 {sXCD}, {sB}, 7
s_lshr_b32 {sJ}, {sB}, 3
s_lshl_b32 s12, {sXCD}, 5
s_add_u32 {sBPP}, s12, {sJ}
v_lshlrev_b32 {v16}, 4, {vL}
s_lshl2_add_u32 {sFLN}, {sBPP}, {sW}
s_lshl_b32 {sXL}, {sFLN}, 11
s_lshl_b32 s13, {sFLN}, 7
v_lshl_add_u32 v162, {vL}, 1, s13
s_mov_b32 s54, {2048*512*2}
s_mov_b32 s55, 0x00020000
s_and_b32 {sW1}, {sW}, 1
s_lshr_b32 {sWH}, {sW}, 1
v_mov_b32 v164, {W0}
s_add_u32 {sFLN}, s13, {FL_LN}''')
a.wait_lg()
if PROF:
    names.append('start'); a(f'v_writelane_b32 {vST}, s100, 0')
stamp('kernarg')
a(f's_mov_b32 s52, s16\ns_mov_b32 s53, s17')
a(f'buffer_load_dwordx4 {vr(XR, 4)}, {v16}, {X_SRD}, {sXL} offen')
a(f'buffer_load_dwordx4 {vr(XR+4, 4)}, {v16}, {X_SRD}, {sXL} offen offset:1024')
for i, n in enumerate(['are', 'aim', 'bre', 'bim', 'cre', 'cim']): a(f'global_load_ushort v{PR+i}, v162, {ptr(n)}')
a(srd(WS_SRD, 'ws', 0x10000000) + f'\nbuffer_load_dword v5, v164, {WS_SRD}, 0 offen sc1')
if MAPB:
    a(f's_and_b32 s12, {sXCD}, 1\ns_and_b32 {sW1N}, {sJ}, 7\ns_lshl3_add_u32 {sRT1}, s12, {sW1N}\ns_lshr_b32 s12, {sXCD}, 1\ns_lshr_b32 s13, {sJ}, 3\ns_lshl2_add_u32 {sCG}, s12, s13\ns_and_b32 s13, {sJ}, 3\ns_lshr_b32 {sCT2}, {sJ}, 2')
else:
    a(f's_lshr_b32 s12, {sXCD}, 1\ns_and_b32 s13, {sJ}, 3\ns_lshl2_add_u32 {sRT1}, s12, s13\ns_lshl_b32 {sW1N}, s13, 1\ns_and_b32 s12, {sXCD}, 1\ns_lshr_b32 {sCT2}, {sJ}, 2\ns_lshl3_add_u32 {sCG}, s12, {sCT2}')
a(f's_lshl2_add_u32 {sRT2}, {sXCD}, s13\ns_lshl2_add_u32 {sU}, {sB}, {sW}')
for t3 in range(3):
    a(f'v_add_u32 v166, {64*t3}, {vL}\nv_mul_u32_u24 v167, 5462, v166\nv_lshrrev_b32 v167, 16, v167\nv_mul_u32_u24 v168, {2752 - 192}, v167')
    a(f'v_lshl_add_u32 v{7+t3}, {vL}, 4, v168')
a(srd(W1_SRD, 'w1', 512*1376*2))
a(f'''s_mul_i32 s12, {sW}, {128*2752}
s_mul_i32 s15, {sCG}, 192
s_add_u32 {sW1GB}, s12, s15
s_mul_i32 {sW1LB}, {sW}, {24*1024}
s_add_u32 {sW1LB}, {sW1LB}, {L_W1}
s_add_u32 s34, {sW1N}, 7
s_and_b32 s34, s34, 7
s_mul_i32 s34, s34, 3072
s_add_u32 {sW2UL}, s34, {sW1LB}''')
def w1_group(restore=None):
    a(f's_mul_i32 {sW1G}, {sW1N}, {16*2752}\ns_mul_i32 {sW1L}, {sW1N}, 3072\ns_add_u32 {sW1G}, {sW1G}, {sW1GB}\ns_add_u32 m0, {sW1L}, {sW1LB}\ns_add_u32 {sW1N}, {sW1N}, 1')
    for t3 in range(3): a(f'buffer_load_dwordx4 v{7+t3}, {W1_SRD}, {sW1G} offen offset:{1024*t3} lds', tag='w1')
    a(f's_and_b32 {sW1N}, {sW1N}, 7')
    if restore: a(f's_mov_b32 m0, {restore}')
NG1 = int(opt('ng1', 1 if MAPB else 2))
for g in range(NG1): w1_group()
a(f'v_lshlrev_b32 v166, 1, {vL}\nv_mov_b32 v167, 0x100000\nv_cmp_gt_u32 vcc, 32, {vL}\ns_lshl1_add_u32 s12, {sCT2}, {sW1}\ns_lshl_b32 {sDO}, s12, 6\nv_cndmask_b32 v166, v167, v166, vcc')
a(srd(B1_SRD, 'b1', 1376*2))
for ct in range(3): a(f'buffer_load_ushort a{240+4*ct}, v166, {B1_SRD}, s15 offen offset:{64*ct}')
a(srd(B2_SRD, 'b2', 1024) + f'\nbuffer_load_ushort a252, v166, {B2_SRD}, {sDO} offen')
a(f'''v_lshrrev_b32 v165, 3, {vL}
v_lshlrev_b32 v165, 10, v165
v_and_b32 v166, 7, {vL}
v_lshlrev_b32 {vSL}, 4, v166
v_lshl_add_u32 {vSL}, v165, 2, {vSL}
v_bfe_u32 v174, {vL}, 4, 1
v_lshlrev_b32 v167, 2, v174
v_xor_b32 v166, v166, v167
v_lshl_add_u32 v165, v166, 4, v165''')
a(srd(W2_SRD, 'w2', 1376*512*2))
a(f'''s_lshr_b32 s34, {sU}, 3
s_and_b32 s35, {sU}, 7
s_lshl_b32 s12, s34, 14
s_lshl_b32 s13, s35, 7
s_add_u32 s12, s12, s13
s_add_u32 s13, s12, {8192-1024}
s_mov_b32 m0, {sW2UL}''')
a(f'buffer_load_dwordx4 v165, {W2_SRD}, s12 offen lds', tag='w2u')
a(f'buffer_load_dwordx4 v165, {W2_SRD}, s13 offen offset:1024 lds', tag='w2u')
stamp('issued')
a(f'''s_mul_i32 s12, {sW}, 2080
s_add_u32 s12, s12, {L_LNS}
v_add_u32 v168, s12, {v16}
v_and_b32 v171, 7, v0
v_lshrrev_b32 v172, 3, v0
v_mul_u32_u24 v169, 1040, v171
v_lshl_add_u32 v169, v172, 4, v169
v_add_u32 v169, {L_LNS}, v169
v_lshlrev_b32 v172, 9, v172
v_lshl_add_u32 v170, v171, 4, v172
s_lshr_b32 s12, {sBPP}, 2
s_lshl_b32 s12, s12, 8
s_and_b32 s13, {sBPP}, 3
s_add_u32 s12, s12, s13
s_lshl_b32 {sXS}, s12, 7
s_add_u32 {sXS1}, {sXS}, 16384
s_mul_i32 s35, s35, 88
s_add_u32 s12, s35, s34
s_lshl_b32 s12, s12, 11
s_add_u32 s12, s12, {W2T}
s_cmp_lt_u32 {sU}, 704
s_cselect_b32 {sW2S}, s12, {DROP}
s_lshl_b32 {sFW}, {sU}, 7
s_add_u32 {sFW}, {sFW}, {FL_W}
s_mul_i32 {sTM}, {sWH}, {TABC}
s_lshl_b32 s14, {sW1}, 8
v_lshrrev_b32 v160, 5, {vL}
v_bfe_u32 v161, {vL}, 2, 2
v_lshl_add_u32 v173, v160, 3, v161
v_mul_u32_u24 v173, 192, v173
v_and_b32 v175, 3, {vL}
v_lshlrev_b32 v175, 3, v175
v_lshl_add_u32 v175, v174, 5, v175
v_add_u32 v173, v173, v175
v_add_u32 {vWA}, {L_W1}, v173
v_add_u32 {vWB}, {L_W1+49152}, v173
v_lshl_add_u32 v173, v160, 2, v161
v_lshlrev_b32 v173, 7, v173
v_add_u32 {vSR}, v173, v175
v_lshlrev_b32 v174, 1, v174
v_bfe_u32 v175, {vL}, 1, 1
v_add_u32 v174, v174, v175
v_bfe_u32 v175, {vL}, 3, 1
v_lshlrev_b32 v175, 2, v175
v_xor_b32 v174, v174, v175
v_lshl_add_u32 v173, v174, 4, v173
v_and_b32 v174, 1, {vL}
v_lshl_add_u32 v173, v174, 3, v173
v_add_u32 v252, {sW2UL}, v173
v_xor_b32 v253, 64, v252
s_lshl2_add_u32 s12, {sRT1}, {sW}
s_lshl_b32 {sXA}, s12, 15
s_lshl_b32 s13, s12, 11
s_add_u32 s13, s13, {FL_LN}
v_and_b32 {vMA}, 15, {vL}
v_lshl_add_u32 {vFX}, {vMA}, 7, s13
v_mov_b32 v6, 0
v_mov_b32 v{ONES}, 0x3f80
v_mov_b32 v{ONES+1}, 0
v_mov_b32 v{ONES+2}, 0
v_mov_b32 v{ONES+3}, 0
v_lshrrev_b32 {vMB}, 4, {vL}
v_or_b32 {vDS}, {vMA}, {vMB}
v_or_b32 {vDS}, {sW1}, {vDS}
s_add_u32 {sTM}, {sTM}, s14''')
for i in range(16):
    if i % 4: a(f'v_accvgpr_write_b32 a{240+i}, 0')
a(srd(OUT_SRD, 'out', 2048*512*2))
stamp('precomp')

a('s_mov_b32 s12, 0x3f803f80')
A0 = 176
for k in range(4):
    for r in range(2):
        x = f'v{XR+4*r+k}'; sa, sq = A0 + r, A0 + 2 + r
        a(f'v_dot2_f32_bf16 v{sa}, {x}, s12, {"0" if k == 0 else f"v{sa}"}')
        a(f'v_dot2_f32_bf16 v{sq}, {x}, {x}, {"0" if k == 0 else f"v{sq}"}')
stamp('xarrive')
a(f's_lshl_b32 s46, {sBPP}, 2\ns_load_dword s47, {ptr("ldt")}, s46\ns_load_dword s46, {ptr("dsk")}, s46')
unp_items = []
for r in range(2):
    for k in range(4):
        x = f'v{XR+4*r+k}'; t = 184 + 8*r + 2*k
        unp_items += lines(f'v_lshlrev_b32 v{t}, 16, {x}\nv_and_b32 v{t+1}, 0xffff0000, {x}')
for mod in ['row_shr:1 row_mask:0xf bank_mask:0xf bound_ctrl:0', 'row_shr:2 row_mask:0xf bank_mask:0xf bound_ctrl:0',
            'row_shr:4 row_mask:0xf bank_mask:0xf bound_ctrl:0', 'row_shr:8 row_mask:0xf bank_mask:0xf bound_ctrl:0',
            'row_bcast:15 row_mask:0xa bank_mask:0xf', 'row_bcast:31 row_mask:0xc bank_mask:0xf']:
    for r in range(A0, A0 + 4): a(f'v_add_f32_dpp v{r}, v{r}, v{r} {mod}')
M, Q = vr(A0, 2), vr(A0 + 2, 2); q0, q1, m0_, m1_ = f'v{A0+2}', f'v{A0+3}', f'v{A0}', f'v{A0+1}'
def rnd2(lo, hi, t): return lines(f'v_cvt_pk_bf16_f32 {t}, {lo}, {hi}\nv_lshlrev_b32 {lo}, 16, {t}\nv_and_b32 {hi}, 0xffff0000, {t}')
St = [L(f'v_readlane_b32 s{12+r}, v{A0+r}, 63') for r in range(4)] + [L(f'v_mov_b32 v180, {fbits(1/512)}')]
St += [L(f'v_mul_f32 v{A0+r}, s{12+r}, v180') for r in range(4)]
St += lines(f'v_pk_fma_f32 {Q}, {M}, {M}, {Q} neg_lo:[1,0,0] neg_hi:[1,0,0]\nv_max_f32 {q0}, 0, {q0}\nv_max_f32 {q1}, 0, {q1}')
St += rnd2(q0, q1, 'v181') + lines(f'v_add_f32 {q0}, {fbits(1e-5)}, {q0}\nv_add_f32 {q1}, {fbits(1e-5)}, {q1}') + rnd2(q0, q1, 'v181')
St += lines(f'v_sqrt_f32 {q0}, {q0}\nv_sqrt_f32 {q1}, {q1}') + rnd2(m0_, m1_, 'v180') + rnd2(q0, q1, 'v181')
St += lines(f'v_rcp_f32 {q0}, {q0}\nv_rcp_f32 {q1}, {q1}')
weave(St, spread(unp_items, 4, len(St)))
a(f'v_readfirstlane_b32 {sTAG}, v5')
a(f'v_pk_mul_f32 {M}, {M}, {Q} neg_lo:[1,0] neg_hi:[1,0]')
for r in range(2):
    sel = 'op_sel:[0,0,0] op_sel_hi:[1,0,0]' if r == 0 else 'op_sel:[0,1,1] op_sel_hi:[1,1,1]'
    for k in range(4):
        t = 184 + 8*r + 2*k; a(f'v_pk_fma_f32 {vr(t, 2)}, {vr(t, 2)}, {Q}, {M} {sel}')
    for k in range(4):
        t = 184 + 8*r + 2*k; a(f'v_cvt_pk_bf16_f32 v{XR+4*r+k}, v{t}, v{t+1}')
    a(f'ds_write_b128 v168, {vr(XR+4*r, 4)} offset:{1040*r}')
a(f's_mul_i32 {sTAG}, {sTAG}, 0x9E3779B1\ns_add_u32 {sTAG}, {sTAG}, 0x7F4A7C15')
stamp('lncomp')
a.barrier()
a('ds_read_b128 v[176:179], v169\nds_read_b128 v[180:183], v169 offset:512')
a(f'v_mov_b32 v5, {sTAG}')
a(f's_mov_b32 m0, {sTM}')
a(f'buffer_store_dwordx4 v[176:179], v170, {WS_SRD}, {sXS} offen sc1', tag='ln')
a(f'buffer_store_dwordx4 v[180:183], v170, {WS_SRD}, {sXS1} offen sc1', tag='ln')
stamp('lnstores')

T = []
def cmul(d, x, y):
    T.append(L(f'v_pk_mul_f32 {vr(d,2)}, {vr(x,2)}, {vr(y,2)} op_sel:[0,0] op_sel_hi:[0,1]'))
    T.append(L(f'v_pk_fma_f32 {vr(d,2)}, {vr(x,2)}, {vr(y,2)}, {vr(d,2)} op_sel:[1,1,0] op_sel_hi:[1,0,1] neg_lo:[1,0,0]'))
T.append(L(f's_lshl_b32 s12, {sWH}, 4\ns_lshr_b32 s47, s47, s12\ns_lshl_b32 s47, s47, 16\ns_lshr_b32 s46, s46, s12\ns_lshl_b32 s46, s46, 16\nv_mov_b32 v{PR+6}, s47\nv_mov_b32 v{PR+7}, s46'))
for i in range(6): T.append(L(f'v_lshlrev_b32 v{PR+i}, 16, v{PR+i}'))
are, aim, bre, bim, cre, ldt, dsk = PR, PR+1, PR+2, PR+3, PR+4, PR+6, PR+7
T += lines(f'''v_mul_f32 v{ldt}, {fbits(LOG2E)}, v{ldt}
v_exp_f32 v{ldt}, v{ldt}''')
T.append(L(f'v_cmp_eq_u32 vcc, 0, {vDS}\nv_cvt_pk_bf16_f32 v{ldt}, v{ldt}, v{ldt}\nv_lshlrev_b32 v{ldt}, 16, v{ldt}\nv_cndmask_b32 {vDS}, 0, v{dsk}, vcc'))
T += lines(f'''v_mul_f32 v{are}, v{ldt}, v{are}
v_mul_f32 v{aim}, v{ldt}, v{aim}
v_mul_f32 v{bre}, v{ldt}, v{bre}
v_mul_f32 v{bim}, v{ldt}, v{bim}
v_mul_f32 v{are}, {fbits(LOG2E)}, v{are}
v_mul_f32 v{aim}, {fbits(0.15915494309189535)}, v{aim}''')
G0, E1, E8, E256, E512, E1024, E32 = 160, 162, 164, 166, 168, 170, 172
cmul(G0, cre, bre)
ls = [(E1, 1.0), (E8, 8.0), (E256, 256.0)]
for i, (d, l) in enumerate(ls): T += lines(f'v_mul_f32 v{224+2*i}, {fbits(l)}, v{aim}\nv_mul_f32 v{225+2*i}, {fbits(l)}, v{are}')
for i, (d, l) in enumerate(ls): T += lines(f'v_fract_f32 v{224+2*i}, v{224+2*i}\nv_exp_f32 v{225+2*i}, v{225+2*i}')
for i, (d, l) in enumerate(ls): T += lines(f'v_cos_f32 v{d}, v{224+2*i}\nv_sin_f32 v{d+1}, v{224+2*i}')
for i, (d, l) in enumerate(ls): T += lines(f'v_mul_f32 v{d}, v{225+2*i}, v{d}\nv_mul_f32 v{d+1}, v{225+2*i}, v{d+1}')
tmpc = [224, 225, 226, 227]; tci = [0]
def put(row, x, neg):
    t = tmpc[tci[0] % 4]; tci[0] += 1
    T.append(L(f'v_cvt_pk_bf16_f32 v{t}, v{x}, {"-" if neg else ""}v{x+1}'))
    T.append(L(f'ds_write_addtid_b32 v{t} offset:{row*528}'))
T += lines(f'ds_write_addtid_b32 v{ONES}')
Pa = [174, 176, 178, 180]; Pb = [182, 184, 186, 188]
cmul(Pa[2], E8, E8); put(1, E8, False)
cmul(E512, E256, E256); put(32, G0, True)
cmul(Pa[3], Pa[2], E8); cmul(E32, Pa[2], Pa[2]); put(2, Pa[2], False)
cmul(E1024, E512, E512)
cmul(Pb[1], E8, E32); put(3, Pa[3], False); cmul(Pb[2], Pa[2], E32); put(4, E32, False); cmul(Pb[3], Pa[3], E32)
put(5, Pb[1], False); put(6, Pb[2], False); put(7, Pb[3], False)
cur = [E32, Pb[1], Pb[2], Pb[3]]
G = {0: G0}; free = [190, 192, 194, 196, 198, 208, 210, 212, 214, 216, 218, 220, 222]
hi_jobs = []
DEAD = {2: [1], 4: [3], 6: [5], 7: [7], 258: [258, 2], 262: [262, 6], 516: [516, 4], 772: [772, 260], 1280: [1280, 256], 1536: [1536, 512], 1792: [1792, 768]}
def hj(h, src, e, row):
    def f():
        G[h] = free.pop(0); cmul(G[h], G[src], e); put(row, G[h], True)
        for dead in DEAD.get(h, []): free.append(G[dead])
    hi_jobs.append(f)
for h in range(1, 8): hj(h, h - 1, E1, 32 + h)
for i, h in enumerate([0, 2, 4, 6]): hj(256 + h, h, E256, 40 + i)
for i, (h, src) in enumerate([(512, 0), (516, 4), (768, 256), (772, 260)]): hj(h, src, E512, 44 + i)
for i, (h, src) in enumerate([(1024, 0), (1280, 256), (1536, 512), (1792, 768), (2048, 1024)]): hj(h, src, E1024, 48 + i)
for q in range(2, 8):
    dst = Pa if q % 2 == 0 else Pb
    for i in range(4):
        cmul(dst[i], cur[i], E32); put(4*q+i, dst[i], False)
        if hi_jobs: hi_jobs.pop(0)()
    cur = list(dst)
assert not hi_jobs
nT = len(T)
W2R = 200
def w2u_read():
    a.wait_vm('w2u')
    for sl, base in enumerate(['v252', 'v253']):
        for q in range(2): a(f'ds_read_b64_tr_b16 {vr(W2R+4*sl+2*q, 2)}, {base} offset:{q*1024}', tag='w2r')
def w2u_store(i):
    def f():
        a(f'buffer_store_dwordx4 {vr(W2R+4*i, 4)}, {v16}, {WS_SRD}, {sW2S} offen offset:{1024*i} sc1', tag='w2s')
    return f
def pub_ln():
    stamp('pre_publn'); a.wait_vm('ln'); stamp('ln_landed'); publish(sFLN)
PRE1 = lines(f'''s_mul_i32 {sCTB}, {sWH}, {CTC}
s_add_u32 {sCTB}, {sCTB}, {L_CT}
s_lshl_b32 s12, {sW1}, 6
v_add_u32 {vTT}, s12, {vL}
v_lshlrev_b32 {vSG}, 5, {vMA}
v_lshlrev_b32 v173, 4, {vMB}
v_sub_u32 v174, v173, {vSG}
v_lshl_add_u32 {vSG}, {vMB}, 3, {vSG}
s_mul_i32 s12, {sWH}, {UTC}
s_lshl_b32 s13, {sW1}, 8
s_add_u32 s12, s12, s13
s_add_u32 s12, s12, {L_UT+480}
v_add_u32 {vUB_}, s12, v174
v_and_b32 v174, 1, {vL}
v_mul_u32_u24 v174, {KTC}, v174
v_bfe_u32 v175, {vL}, 1, 3
v_lshl_add_u32 v174, v175, 2, v174
s_mul_i32 {sKM}, {sWH}, {2*KTC}
s_add_u32 {sKM}, {sKM}, s13
v_add3_u32 {vK0}, v174, v173, {sKM}
s_lshl_b32 s13, {sW1}, 4
v_add_u32 v160, s13, {vMA}
v_mov_b32 v161, {vMB}
v_mul_u32_u24 {vMA}, 528, {vMA}
s_mul_i32 s12, {sWH}, {TABC}
v_add3_u32 {vMA}, {vMA}, v173, s12
s_mul_i32 s13, {sW1}, {16*528}
v_add_u32 {vMB}, s13, {vMA}
v_lshlrev_b32 {vC0}, 3, v160
v_lshl_add_u32 {vC0}, v161, 2, {vC0}
v_lshlrev_b32 v173, 2, v160
v_add_u32 v173, 0x100, v173
v_cmp_eq_u32 vcc, 2, v161
v_lshlrev_b32 v174, 1, v160
v_add_u32 v174, 0x180, v174
v_cndmask_b32 {vC0}, {vC0}, v173, vcc
v_cmp_eq_u32 vcc, 3, v161
v_mov_b32 v173, 2
v_mov_b32 v175, 64
v_cndmask_b32 {vC0}, {vC0}, v174, vcc
v_cndmask_b32 v173, v173, v175, vcc
v_add_u32 {vC1}, {vC0}, v173
v_lshl_add_u32 {vC0}, {vC0}, 1, {sCTB}
v_lshl_add_u32 {vC1}, {vC1}, 1, {sCTB}
v_lshl_add_u32 {vC2}, v161, 7, v160
v_add_u32 {vC2}, 0x200, {vC2}
v_lshl_add_u32 {vC2}, {vC2}, 1, {sCTB}''')
xl_state = [0]
def xload():
    ks = xl_state[0]; xl_state[0] += 1
    a(f'buffer_load_dwordx4 {vr(32+4*ks, 4)}, {v16}, {WS_SRD}, {sXA} offen offset:{(ks % 4)*1024} sc1')
    if ks % 4 == 3: a(f's_add_u32 {sXA}, {sXA}, 4096')
rest = [lambda: w1_group(sTM)] * (8 - NG1)
sides = spread(rest, nT * opt('w1beg', .3), nT * opt('w1end', .8))
sides.append((nT * opt('w2rd', .3), w2u_read))
sides.append((nT * opt('publn', .42), pub_ln))
sides.append((nT * opt('w2st', .46), w2u_store(0)))
sides.append((nT * opt('w2st', .46) + 12, w2u_store(1)))
assert opt('w2st', .46) * nT + 12 < sides[len(rest) - 1][0], 'w2 unit must be read before the last W1 group DMA'
sides.append((nT * opt('xpoll', .66), lambda: poll_issue(vFX, vPT)))
NX1 = int(opt('nx1', 5)); NX2 = int(opt('nx2', 4))
def pub_w():
    a.wait_vm('w2s'); publish(sFW)
xc = nT * opt('xchk', .8)
sides.append((xc, lambda: (stamp('pre_xchk'), poll_check(vFX, vPT), stamp('xready'))))
sides += spread([xload] * NX1, xc + 1, nT)
sides.append((nT * opt('pubw', .99), pub_w))

sides.append((nT * opt('xpoll', .66) - 0.5, lambda: stamp('pre_xpoll')))
weave(T, sides)
stamp('t_end')
weave(PRE1, spread([xload] * NX2, 0, len(PRE1)))
a.wait_vm('w1')
stamp('tables')
a.barrier()

KR = 32
KD = 208
def krd(kk):
    return [L(f'ds_read_b128 {vr(KR+12*kk, 4)}, {vMA} offset:{32*528+64*kk}'), L(f'ds_read_b128 {vr(KR+12*kk+8, 4)}, {vMB} offset:{64*kk}'), L(f'ds_read_b128 {vr(KR+12*kk+4, 4)}, {vMA} offset:{48*528+64*kk}')]
def kmf(k2):
    return [L(f'v_mfma_f32_16x16x32_bf16 {vr(KD, 4)}, {vr(KR+12*k2, 4)}, {vr(KR+12*k2+8, 4)}, {"0" if k2 == 0 else vr(KD, 4)}'),
            L(f'v_mfma_f32_16x16x32_bf16 {vr(KD+4, 4)}, {vr(KR+12*k2+4, 4)}, {vr(KR+12*k2+8, 4)}, {"0" if k2 == 0 else vr(KD+4, 4)}')]
EAd = lines(f'''v_lshlrev_b32 v254, 2, {vTT}
v_add_u32 v{EA[1]}, {sCTB}, v254
v_subrev_u32 v{EA[0]}, 2, v{EA[1]}
v_mov_b32 v253, {sCTB}
ds_write_b32 v253, v6 offset:2048''')
EAd.append(L(f'v_cmp_eq_u32 vcc, 0, {vTT}\nv_add_u32 v253, 2048, v253\nv_lshlrev_b32 v254, 1, {vTT}\nv_cndmask_b32 v{EA[0]}, v{EA[0]}, v253, vcc'))
EAd += lines(f'v_cvt_f32_u32 v254, v254\ns_sub_u32 s14, {sCTB}, {2*(0x4300-128)}')
for si, it in enumerate([1, 2, 4]):
    b0, b1, b2 = EA[2+3*si], EA[3+3*si], EA[4+3*si]
    EAd += lines(f'''v_add_f32 v{b0}, {fbits(256.0*it-1)}, v254
v_add_f32 v{b1}, {fbits(256.0*it)}, v254
v_add_f32 v{b2}, {fbits(256.0*it+1)}, v254
v_cvt_pk_bf16_f32 v{b1}, v{b0}, v{b1}
v_cvt_pk_bf16_f32 v{b2}, v{b2}, v{b2}
v_and_b32 v{b0}, 0xffff, v{b1}
v_lshrrev_b32 v{b1}, 16, v{b1}
v_lshrrev_b32 v{b2}, 16, v{b2}
v_lshl_add_u32 v{b0}, v{b0}, 1, s14
v_lshl_add_u32 v{b1}, v{b1}, 1, s14
v_lshl_add_u32 v{b2}, v{b2}, 1, s14''')

KA = int(opt('ka', 18)); KB_ = 32 - KA
order = [(ks, ct) for ks in range(KA) for ct in range(3)] + [(ks, ct) for ct in range(3) for ks in range(KA, 32)]
def wread(n):
    ks, ct = order[n]
    base = vWA if ks < 16 else vWB; o = (ks % 16) * 3072; rb = WB + 4 * (n % NWS)
    for q in range(2): a(f'ds_read_b64_tr_b16 {vr(rb+2*q, 2)}, {base} offset:{o+768*q+64*ct}', tag=f'wf{n}')
for n in range(4): wread(n)
Gm = [L(f'v_mfma_f32_32x32x16_bf16 {vr(160+16*ct, 16)}, {ar(240+4*ct, 4)}, {vr(ONES, 4)}, 0') for ct in range(3)]
def g1(n):
    ks, ct = order[n]
    def f():
        if n % 2 == 0: a.wait_lg(f'wf{n+1}')
        a(f'v_mfma_f32_32x32x16_bf16 {vr(160+16*ct, 16)}, {vr(WB+4*(n % NWS), 4)}, {vr(32+4*ks, 4)}, {vr(160+16*ct, 16)}')
    return f
Gm += [g1(n) for n in range(96)]
sides = []
for n in range(4, 96):
    sides.append((3 + n - 5 + 0.1, (lambda n=n: wread(n))))
XSP = opt('xsp', 2.0)
for i in range(32 - NX1 - NX2): sides.append((XSP*i + 0.5, xload))
F0 = lines(f'''s_mov_b32 m0, {sKM}
v_lshrrev_b32 v252, 5, {vL}
v_and_b32 v253, 31, {vL}
v_lshlrev_b32 {vXG}, 10, v253
v_lshl_add_u32 {vXG}, v252, 3, {vXG}
v_lshlrev_b32 {vUG}, 15, v252
v_lshl_add_u32 {vUG}, v253, 4, {vUG}
v_mul_u32_u24 {vUZ}, {UTC}, v252
v_lshl_add_u32 {vUZ}, v253, 4, {vUZ}
s_lshr_b32 s12, {sBPP}, 5
s_and_b32 s12, s12, 3
s_lshl_b32 s13, {sW}, 8
s_add_u32 s12, s12, s13
s_lshl_b32 s12, s12, 7
s_add_u32 s12, s12, {FL_LN}
v_lshl_add_u32 {vFU}, {vL}, 9, s12
s_lshl_b32 s12, {sW}, 19
s_lshr_b32 s13, {sBPP}, 2
s_lshl_b32 s13, s13, 9
s_add_u32 s12, s12, s13
s_and_b32 s13, {sBPP}, 3
s_lshl2_add_u32 {sUA}, s13, s12
s_lshl_b32 s12, {sW}, 10
s_sub_u32 s12, {L_UT+4094-896}, s12
v_lshlrev_b32 {vUL}, 1, {vL}
v_sub_u32 {vUL}, s12, {vUL}''')
FE = EAd + lines(f'''s_lshl2_add_u32 s12, {sRT1}, {sW}
s_mul_i32 s12, s12, 86
s_mul_i32 s13, {sCG}, 6
s_add_u32 s12, s12, s13
s_lshl_b32 s12, s12, 10
s_add_u32 {sHST0}, s12, {HH}
s_lshl_b32 s12, {sW1}, 12
s_lshl_b32 s13, {sWH}, 6
s_add_u32 s12, s12, s13
s_add_u32 s12, s12, {L_SST}
v_add_u32 {vSR}, s12, {vSR}
s_lshl1_add_u32 s12, {sBPP}, {sWH}
s_lshl1_add_u32 s12, s12, {sW1}
s_lshl_b32 s12, s12, 11
s_add_u32 {sSST}, s12, {SB}''')
GD = ['v%d' % r for r in range(128, 152)]
def gsrc(it, e):
    if it == 0: return (EA[0], 0) if e == 0 else (EA[1], 2 * (e - 1))
    si = {1: 0, 2: 1, 3: 1, 4: 2, 5: 2, 6: 2, 7: 2}[it]; off = {1: 0, 2: 0, 3: 128, 4: 0, 5: 64, 6: 128, 7: 192}[it]
    return (EA[2 + 3*si + e], off)
def gather(it):
    return [L(f'ds_read_u16 {GD[3*it+e]}, v{gsrc(it, e)[0]} offset:{gsrc(it, e)[1]}') for e in range(3)]
def pack(it):
    b0, b1, b2 = GD[3*it], GD[3*it+1], GD[3*it+2]
    return lines(f'v_lshl_or_b32 {b0}, {b1}, 16, {b0}\nv_lshl_or_b32 {b1}, {b2}, 16, {b1}\nds_write_addtid_b32 {b0} offset:{28+512*it}\nds_write_addtid_b32 {b1} offset:{KTC+28+512*it}')
EX = []
for it in range(8): EX += gather(it)
EXP = []
for it in range(8): EXP += pack(it)
EX += lines(f'ds_write_b64 {vUZ}, v[30:31] offset:{L_UT+4096}\nds_write_b64 {vUZ}, v[30:31] offset:{L_UT+4096+8}')
EX.append(L(f'v_cmp_gt_u32 vcc, 7, {vTT}\ns_and_saveexec_b64 s[14:15], vcc\nds_write_addtid_b32 v6\nds_write_addtid_b32 v6 offset:{KTC}\ns_mov_b64 exec, s[14:15]'))
F1 = lines(f'''s_mul_i32 s12, {sW}, 176
s_add_u32 s12, s12, {sCT2}
s_lshl_b32 s12, s12, 7
s_add_u32 s12, s12, {FL_W}
v_min_u32 {vFW}, 21, {vL}
v_lshl_add_u32 {vFW}, {vFW}, 10, s12''')
F2 = lines(f'''s_mul_i32 s12, {sCT2}, 88
s_mul_i32 s13, {sW}, 22
s_add_u32 s12, s12, s13
s_lshl_b32 s12, s12, 11
s_add_u32 {sW2A}, s12, {W2T}
s_lshl_b32 s12, {sW1}, 10
v_add_u32 {vW2a}, s12, {v16}
v_xor_b32 {vFX}, 0x400, {vW2a}
v_add_u32 v7, 0x400, {vK0}
v_add_u32 v8, 0x800, {vK0}
v_add_u32 v9, 0xc00, {vK0}
s_lshl4_add_u32 s12, {sRT1}, {sCG}
s_lshl2_add_u32 s12, s12, {sW}
s_lshl_b32 s12, s12, 7
s_add_u32 {sFH}, s12, {FL_H}
s_add_u32 {sHST1}, {sHST0}, 2048
s_add_u32 {sHST2}, {sHST0}, 4096''')
F2.append(L(f's_cmp_lt_u32 {sCG}, 15\ns_cselect_b32 {sHST0}, {sHST0}, {DROP}'))
F2.append(L(f's_cmp_lt_u32 {sCG}, 14\ns_cselect_b32 {sHST1}, {sHST1}, {DROP}\ns_cselect_b32 {sHST2}, {sHST2}, {DROP}'))
sides += spread(F0, 0, 12)
sides += spread(F1, 12, 15)
sides += spread(FE, 16, 44)
sides += spread(F2, 44, 54)
sides.append((opt('upoll', 24), lambda: poll_issue(vFU, vPT)))
uc = opt('uchk', 46)
sides.append((uc, lambda: poll_check(vFU, vPT)))
def uload(i):
    return L(f'buffer_load_dword a{232+i}, {vUG}, {WS_SRD}, {sUA} offen sc1' + (f'\ns_add_u32 {sUA}, {sUA}, 65536' if i < 7 else ''))
sides += spread([uload(i) for i in range(8)], uc + 0.7, uc + 16.7)
uw = []
for i in range(8):
    uw += lines(f'ds_write_b16 {vUL}, a{232+i} offset:{896-128*i}\nds_write_b16_d16_hi {vUL}, a{232+i} offset:{UTC+896-128*i}')
vW2b = vFX
sides.append((opt('wpoll', 34), lambda: poll_issue(vFW, vPT2)))
wc = opt('wchk', 55)
sides.append((wc, lambda: poll_check(vFW, vPT2)))
w2_state = [0]
def w2load():
    i = w2_state[0]; w2_state[0] += 1
    kk, sl = i // 2, i % 2
    a(f'buffer_load_dwordx4 {ar(8*kk+4*sl, 4)}, {vW2a if sl == 0 else vW2b}, {WS_SRD}, {sW2A} offen offset:{(kk % 2) * 2048} sc1')
    if sl and kk % 2: a(f's_add_u32 {sW2A}, {sW2A}, 4096')
NW2G = int(opt('nw2g', 12))
sides += spread([w2load] * NW2G, wc + 1, 99)
KB = [vK0, 'v7', 'v8', 'v9']
def conv_reads(rr):
    kb = 32 + 64 * (rr % 2); ub = kb + 32; out = []
    for q in range(8): out.append(L(f'ds_read_b128 {vr(ub+4*q, 4)}, {vUB_} offset:{3584-512*q+64*rr}'))
    for q in range(8):
        base = KB[q // 2]; o = 16*rr + 128*(q % 2)
        out.append(L(f'ds_read2_b32 {vr(kb+4*q, 2)}, {base} offset0:{o} offset1:{o+1}'))
        out.append(L(f'ds_read2_b32 {vr(kb+4*q+2, 2)}, {base} offset0:{o+2} offset1:{o+3}'))
    return out
NKR = int(opt('nkr', 5))
for kk in range(NKR): sides += spread(krd(kk), 84 + 3*kk, 87 + 3*kk)
def epi1(ct):
    b = 160 + 16*ct; E = []
    for hf in range(2):
        bb = b + 8 * hf
        for i in range(8): E.append(L(f'v_max_f32 v{bb+i}, 0, v{bb+i}'))
        for i in range(4): E.append(L(f'v_pk_mul_f32 {vr(bb+2*i, 2)}, {vr(bb+2*i, 2)}, {vr(bb+2*i, 2)}'))
        for i in range(4): E.append(L(f'v_cvt_pk_bf16_f32 v{bb+i}, v{bb+2*i}, v{bb+2*i+1}'))
    return E
def hstore(i):
    ct, hf = i // 2, i % 2
    return L(f'buffer_store_dwordx4 {vr(160+16*ct+8*hf, 4)}, {v16}, {WS_SRD}, {[sHST0, sHST1, sHST2][ct]} offen offset:{1024*hf} sc1', tag='h')
sides += spread(epi1(0), 99 - 2*KB_ + 3, 99 - KB_ + 1)
sides += spread(epi1(1), 99 - KB_ + 3, 99)
sides += [(99 - 1.5*KB_ + 3, hstore(0)), (99 - KB_ + 3, hstore(1)), (99 - 3, hstore(2))]
if PROF:
    for p in (3, 27, 51, 67, 83): sides.append((p - 0.05, (lambda p=p: stamp(f'g1_{p}'))))
weave(Gm, sides)
stamp('gemm1')
def pub_h():
    stamp('pre_pubh'); a.wait_vm('h'); stamp('h_landed'); publish(sFH)
Mn = []
for kk in range(8):
    if kk + NKR < 8: Mn += krd(kk + NKR)
    Mn += kmf(kk)
weave(epi1(2), spread(Mn, 2, 30) + spread([w2load] * int(opt('nw2k', 4)), 4, 30) + [(20, hstore(3))])
stamp('epi1')
for f in uw[:8]: pass
a(f'''v_add_f32 v{KD}, v{KD}, {vDS}
v_cvt_pk_bf16_f32 v{KD+2}, v{KD+2}, v{KD+3}
v_cvt_pk_bf16_f32 v{KD}, v{KD}, v{KD+1}
v_cvt_pk_bf16_f32 v{KD+4}, v{KD+4}, v{KD+5}
v_cvt_pk_bf16_f32 v{KD+6}, v{KD+6}, v{KD+7}
ds_write_b32 {vC0}, v{KD}
ds_write_b32 {vC1}, v{KD+2}
ds_write_b16 {vC2}, v{KD+4}
ds_write_b16_d16_hi {vC2}, v{KD+4} offset:64
ds_write_b16 {vC2}, v{KD+6} offset:128
ds_write_b16_d16_hi {vC2}, v{KD+6} offset:192''')
hstore(4)()
a.barrier()
stamp('kbar')
XE = 164
FX = lines(f'''s_lshl_b32 s12, {sRT2}, 16
s_lshl_b32 s13, {sWH}, 15
s_add_u32 s12, s12, s13
s_add_u32 {sXO}, s12, {sDO}''')
XEr = [200+4, 200+6, 192+4, 192+6]
FX += [L(f'buffer_load_dwordx2 {vr(XEr[q], 2)}, {vXG}, {X_SRD}, {sXO} offen offset:{16*q}') for q in range(4)]
weave(EX[:24] + uw + EX[24:] + EXP, spread([w2load] * int(opt('nw2e', 7)), 2, 70) + spread(FX, 40, 70) + [(36, hstore(5))])
a.barrier()
stamp('expand')
cr0 = conv_reads(0)
cr0 = cr0[8:10] + cr0[:8] + cr0[10:]
for f in cr0[:12]: f()

CA = 208
Cm = []; sides = []
for rr in range(4):
    kb = 32 + 64 * (rr % 2); ub = kb + 32
    base = len(Cm)
    for q in range(8):
        for ct in range(q, 8):
            c = "0" if (rr == 0 and q == 0) else vr(CA+4*ct, 4)
            Cm.append(L(f'v_mfma_f32_16x16x32_bf16 {vr(CA+4*ct, 4)}, {vr(kb+4*q, 4)}, {vr(ub+4*(ct-q), 4)}, {c}'))
    if rr == 0: sides += spread(cr0[12:], 0, 8)
    if rr + 1 < 4: sides += spread(conv_reads(rr + 1), base + (8 if rr == 0 else 0), base + 34)
nw2 = 44 - w2_state[0]
sides += spread([w2load] * nw2, 1, opt('w2end', 92))
sides.append((opt('pubh', 4), pub_h))
F3 = lines(f'''s_mul_i32 s14, {sW}, {11*21846}
s_lshr_b32 s14, s14, 16
s_lshr_b32 s12, {sRT2}, 1
s_lshl_b32 s12, s12, 5
s_and_b32 s13, {sRT2}, 1
s_add_u32 s12, s12, s13
s_lshl_b32 s12, s12, 8
s_add_u32 s12, s12, {FL_H}
v_lshrrev_b32 v240, 1, {vL}
v_min_u32 v240, 4, v240
v_add_u32 v240, s14, v240
v_min_u32 v240, 14, v240
v_and_b32 {vFH}, 1, {vL}
v_lshl_add_u32 v240, v240, 2, {vFH}
v_lshl_add_u32 {vFH}, v240, 7, s12
s_lshl1_add_u32 s14, {sRT2}, {sWH}
s_xor_b32 s13, s14, 1
s_mul_i32 s14, s14, 86
s_mul_i32 s13, s13, 86
s_mul_i32 s12, {sW}, 22
s_add_u32 s12, s12, {HH >> 10}
s_add_u32 s14, s14, s12
s_add_u32 s13, s13, s12
s_lshl_b32 {sHA0}, s14, 10
s_lshl_b32 {sHA1}, s13, 10
s_lshl_b32 s12, {sW}, 12
s_add_u32 s12, s12, {L_RED}
v_add_u32 {vRR}, s12, {v16}
v_subrev_u32 v240, {L_RED - L_CX}, {vRR}
v_xor_b32 v241, 0x1000, v240
s_lshl2_add_u32 s12, {sBPP}, {sW}
s_lshl_b32 s12, s12, 7
s_add_u32 {sFS}, s12, {FL_S}''')
sides += spread(F3, 0, 60)
h_state = [0]
def hreg(kk, sl):
    if kk < 8: return ar(176 + 8*kk + 4*sl, 4)
    if kk < 12: return vr(160 + 8*(kk-8) + 4*sl, 4)
    if kk == 12: return ar(240 + 4*sl, 4)
    if kk == 13: return [vr(192, 4), vr(200, 4)][sl]
    return vr(96 + 8*(kk-14) + 4*sl, 4)
def hload():
    i = h_state[0]; h_state[0] += 1
    kk, sl = i // 2, i % 2
    sreg = sHA0 if sl == 0 else sHA1
    off = (kk % 4) * 1024
    if kk >= 20:
        if kk == 20: a(f's_cmp_eq_u32 {sW}, 3\ns_cselect_b32 s12, 4096, 0\ns_sub_u32 {sreg}, {sreg}, s12')
        a(f'buffer_load_dwordx4 {hreg(kk, sl)}, {v16}, {WS_SRD}, {sreg} offen offset:{off} sc1')
    else:
        a(f'buffer_load_dwordx4 {hreg(kk, sl)}, {v16}, {WS_SRD}, {sreg} offen offset:{off} sc1')
        if kk % 4 == 3: a(f's_add_u32 {sreg}, {sreg}, 4096')
sides.append((opt('hpoll', 62), lambda: poll_issue(vFH, vPT)))
hc = opt('hchk', 96)
sides.append((hc, lambda: (stamp('pre_hchk'), poll_check(vFH, vPT), stamp('hready'))))
sides += spread([hload] * int(opt('nhc', 12)), hc + 1, 144)
weave(Cm, sides)
stamp('conv')
a(f's_cmp_eq_u32 {sW1}, 0\ns_cbranch_scc0 L_cx1')
a.save('cx')
def cx_w(send):
    for i in range(4): a(f'ds_write_b128 v240, {vr(send+4*i, 4)} offset:{1024*i}')
cx_w(CA + 16)
for i in range(4): a(f'v_mov_b32 v{160+4*i}, v{CA+4*i}\nv_mov_b32 v{161+4*i}, v{CA+4*i+1}\nv_mov_b32 v{162+4*i}, v{CA+4*i+2}\nv_mov_b32 v{163+4*i}, v{CA+4*i+3}') if False else None
a('s_branch L_cx2')
a.save('cxa'); a.restore('cx')
a.label('L_cx1')
cx_w(CA)
for i in range(8): a(f'v_pk_mov_b32 {vr(CA+2*i, 2)}, {vr(CA+16+2*i, 2)}, {vr(CA+16+2*i, 2)} op_sel:[0,1]')
a.label('L_cx2'); a.merge('cxa')
NH0 = int(opt('nh0', 3))
for i in range(NH0): hload()
a.barrier()
for i in range(4): a(f'ds_read_b128 {vr(224+4*i, 4)}, v241 offset:{1024*i}')
for i in range(int(opt('nh1', 3))): hload()
assert h_state[0] <= 28
for i in range(8): a(f'v_pk_add_f32 {vr(224+2*i, 2)}, {vr(224+2*i, 2)}, {vr(CA+2*i, 2)}')
for i in range(8): a(f'v_cvt_pk_bf16_f32 v{224+i}, v{224+2*i}, v{225+2*i}')
for i in range(4): a(f'buffer_store_dwordx2 {vr(224+2*i, 2)}, {vSG}, {WS_SRD}, {sSST} offen offset:{512*i} sc1', tag='s')
XU = 208
UX = []
for i in range(8):
    r = XEr[i // 2] + i % 2
    UX += lines(f'v_lshlrev_b32 v{XU+2*i}, 16, v{r}\nv_and_b32 v{XU+2*i+1}, 0xffff0000, v{r}')
stamp('cx')

AC = 32
TAILK = int(opt('tailk', 4))
ord2 = [(kk, s) for kk in range(22 - TAILK) for s in range(4)] + [(kk, s) for s in (1, 2, 3, 0) for kk in range(22 - TAILK, 22)]
Gm = [L(f'v_mfma_f32_32x32x16_bf16 {vr(AC, 16)}, {ar(252, 4)}, {vr(ONES, 4)}, 0')]
for kk, s in ord2:
    c = "0" if (kk == 0 and s > 0) else vr(AC+16*s, 16)
    Gm.append(L(f'v_mfma_f32_32x32x16_bf16 {vr(AC+16*s, 16)}, {ar(8*kk+4*(s & 1), 4)}, {hreg(kk, s >> 1)}, {c}'))
HSP = opt('hsp', 2.0)
sides = [(HSP*i + 0.5, hload) for i in range(44 - h_state[0])]
F4 = lines(f'''s_lshl_b32 s14, {sCT2}, 7
s_lshr_b32 s13, {sRT2}, 4
s_add_u32 s14, s14, s13
s_lshl_b32 s14, s14, 7
s_add_u32 s14, s14, {FL_S}
v_lshl_add_u32 {vFS}, {vL}, 8, s14
s_lshl3_add_u32 s14, {sCT2}, {sW}
s_lshl_b32 s14, s14, 15
s_lshl_b32 s13, {sRT2}, 7
s_add_u32 s14, s14, s13
s_add_u32 {sSA}, s14, {SB}
s_add_u32 {sSA1}, {sSA}, {32*4096}
v_xor_b32 v240, 0x1000, {vRR}
v_xor_b32 v241, 0x2000, {vRR}
v_xor_b32 v242, 0x3000, {vRR}
s_lshl_b32 s14, {sW}, 10
s_add_u32 s14, s14, {L_SST}
v_add_u32 {vSW}, s14, {v16}
s_mov_b32 s14, {fbits(-LOG2E)}''')
sides += spread(F4, 4, 24)
def pub_s():
    a.wait_vm('s'); publish(sFS)
sides.append((opt('pubs', 16), pub_s))
sides.append((opt('spoll', 58), lambda: poll_issue(vFS, vPT)))
SR = 232
sides += spread(UX, 26, 44)
def s_go():
    poll_check(vFS, vPT)
    a(f'buffer_load_dwordx4 {vr(SR, 4)}, {vSL}, {WS_SRD}, {sSA} offen sc1\nbuffer_load_dwordx4 {vr(SR+4, 4)}, {vSL}, {WS_SRD}, {sSA1} offen sc1')
sides.append((opt('schk', 72), s_go))
nG = len(Gm)
for si, s in enumerate((1, 2, 3)):
    end = nG - TAILK * (3 - si)
    lo = end + 1.0
    sides += spread([L(f'ds_write_b128 v{239+s}, {vr(AC+16*s+4*i, 4)} offset:{16384*(s-1)+1024*i}') for i in range(4)], lo, lo + TAILK)
if PROF:
    for p in (71, 74): sides.append((p - 0.05, (lambda p=p: stamp(f'g2_{p}'))))
weave(Gm, sides)
stamp('gemm2')
a(f'ds_write_b128 {vSW}, {vr(SR, 4)}\nds_write_b128 {vSW}, {vr(SR+4, 4)} offset:4096')
a.barrier()
stamp('redbar')
for q in range(4):
    for s in range(3): a(f'ds_read_b128 {vr(96+16*s+4*q, 4)}, {vRR} offset:{16384*s+1024*q}')
for q in range(4): a(f'ds_read_b64_tr_b16 {vr(144+2*q, 2)}, {vSR} offset:{1024*q}')
for q in range(4):
    for s in range(3):
        for i in range(2): a(f'v_pk_add_f32 {vr(AC+4*q+2*i, 2)}, {vr(AC+4*q+2*i, 2)}, {vr(96+16*s+4*q+2*i, 2)}')
    for i in range(2): a(f'v_pk_mul_f32 {vr(160+4*q+2*i, 2)}, {vr(AC+4*q+2*i, 2)}, s[14:15] op_sel_hi:[1,0]')
    for i in range(4*q, 4*q+4): a(f'v_exp_f32 v{160+i}, v{160+i}')
for i in range(8): a(f'v_pk_add_f32 {vr(160+2*i, 2)}, {vr(160+2*i, 2)}, 1.0 op_sel_hi:[1,0]')
for i in range(8):
    a(f'v_rcp_f32 v{160+2*i}, v{160+2*i}\nv_rcp_f32 v{161+2*i}, v{161+2*i}\nv_lshlrev_b32 v{176+2*i}, 16, v{144+i}\nv_and_b32 v{177+2*i}, 0xffff0000, v{144+i}')
for q in range(4):
    for i in range(2*q, 2*q+2): a(f'v_pk_mul_f32 {vr(AC+2*i, 2)}, {vr(AC+2*i, 2)}, {vr(176+2*i, 2)}')
    for i in range(2*q, 2*q+2): a(f'v_pk_fma_f32 {vr(AC+2*i, 2)}, {vr(AC+2*i, 2)}, {vr(160+2*i, 2)}, {vr(XU+2*i, 2)}')
    for i in range(2*q, 2*q+2): a(f'v_cvt_pk_bf16_f32 v{152+i}, v{AC+2*i}, v{AC+1+2*i}')
    a(f'buffer_store_dwordx2 {vr(152+2*q, 2)}, {vXG}, {OUT_SRD}, {sXO} offen offset:{16*q}')
a(f's_cmp_eq_u32 {sU}, 0\ns_cbranch_scc0 L_fin')
a(f's_mov_b32 s12, {W0}')
publish('s12')
a.label('L_fin')
if PROF:
    stamp('end')
    a(f's_cmp_eq_u32 {sW}, 0\ns_cbranch_scc0 L_end')
    a(f's_lshl_b32 s12, {sB}, 8\ns_add_u32 s12, s12, {PROFB}\nv_lshlrev_b32 v22, 2, {vL}')
    a(f'buffer_store_dword {vST}, v22, {WS_SRD}, s12 offen')
    open(OUT + '.names', 'w').write(','.join(names))
a.label('L_end')
a.raw('  s_endpgm')
for k, (vaddr, vtmp) in enumerate(slow):
    a.raw(f'''L_spin{k}:
  s_mov_b32 s33, 0
L_spinl{k}:
  buffer_load_dword {vtmp}, {vaddr}, {WS_SRD}, 0 offen sc1
  s_add_u32 s33, s33, 1
  s_waitcnt vmcnt(0)
  v_cmp_ne_u32 vcc, {sTAG}, {vtmp}
  s_cbranch_vccz L_back{k}
  s_cmp_lt_u32 s33, 20000
  s_cbranch_scc1 L_spinl{k}
  s_branch L_back{k}''')
a.raw('  .fill 4096, 4, 0xbf800000')

hdr = open(f'cdna_kernels/{NAME}.s.ref').read().split('; @launch')[0]
src = hdr + f"""; @launch grid=(256,1,1) block=(256,1,1) lds={LDS_BYTES}
.amdgcn_target "amdgcn-amd-amdhsa--gfx950"
.text
.globl {NAME}_kernel
.p2align 8
.type {NAME}_kernel,@function
{NAME}_kernel:
{a.text()}.section .rodata,"a"
.p2align 6
.amdhsa_kernel {NAME}_kernel
  .amdhsa_next_free_vgpr 512
  .amdhsa_next_free_sgpr 102
  .amdhsa_accum_offset 256
  .amdhsa_group_segment_fixed_size 0
  .amdhsa_kernarg_size 136
  .amdhsa_user_sgpr_count 2
  .amdhsa_user_sgpr_kernarg_segment_ptr 1
  .amdhsa_system_sgpr_workgroup_id_x 1
.end_amdhsa_kernel
"""
open(OUT, 'w').write(src)
print('instructions', a.ninst, 'auto nops', a.auto_nops, 'max vm', a.maxvm, '->', OUT)
```

```python
import sys, struct
sys.path.insert(0, 'gen')
from asmlib import Asm

NAME = "recurrent_scan__ssm_conv_s4__dense_activation_squared_relu__prompt"
LITE = '--lite' in sys.argv
PROF = '--prof' in sys.argv or LITE
OUT = [a for a in sys.argv[1:] if not a.startswith('--')]
OUT = OUT[0] if OUT else f'cdna_kernels/{NAME}.s'
OPT = dict(x.lstrip('-').split('=') for x in sys.argv[1:] if x.startswith('--') and '=' in x)
def opt(k, d): return float(OPT[k]) if k in OPT else d
def fbits(x): return '0x%08x' % struct.unpack('<I', struct.pack('<f', x))[0]
LOG2E = 1.4426950408889634

XNF, SB, HH, W2T = 0x000000, 0x400000, 0x600000, 0xE00000
FL_LN, FL_H, FL_S, FL_W, W0 = 0xC00000, 0xC20000, 0xC40000, 0xC60000, 0xC80000
PROFB = 0xD00000
DROP = 0x70000000
L_TAB = 0; TABC = 53 * 528
L_W1 = 56320
L_LNS = L_W1 + 98304
L_CT = L_LNS; CTC = 2080
L_KT = 0; KTC = 4160
L_UT = 4 * KTC; UTC = 4608
L_CX = 32768
L_RED = 49152
L_SST = 98304
LDS_BYTES = 163840
assert 2 * TABC <= L_W1 and L_UT + 2 * UTC <= L_CX and L_LNS + 8 * 1040 <= LDS_BYTES

sB, sW, sXCD, sJ, sRT1, sCG, sBPP, sRT2, sCT2, sTAG = 's2', 's3', 's4', 's5', 's6', 's7', 's8', 's9', 's10', 's11'
sW1, sWH = 's50', 's51'
X_SRD, WS_SRD, W1_SRD, W2_SRD, OUT_SRD, B1_SRD, B2_SRD = 's[52:55]', 's[56:59]', 's[60:63]', 's[64:67]', 's[68:71]', 's[72:75]', 's[16:19]'
P = dict(x=16, are=18, aim=20, bre=22, bim=24, cre=26, cim=28, ldt=30, dsk=32, w1=36, b1=38, w2=40, b2=42, out=44, dbg=46, ws=48)
def ptr(n): return f's[{P[n]}:{P[n]+1}]'
(sW1G, sW1L, sW1N, sCTB, sXA, sW2A, sHA0, sHA1, sHST0, sFLN, sFH, sFS, sSST, sUA, sSA, sXO,
 sU, sW1GB, sW1LB, sDO, sXS, sW2S, sFW, sXL) = ['s%d' % i for i in range(76, 100)]
sTM, sKM, sHST1, sHST2, sW2UL, sSA1, sXS1 = 's20', 's21', 's22', 's23', 's24', 's25', 's26'

a = Asm()
names = []
vST = 'v243'
def stamp(name=''):
    if LITE:
        if name == 'end':
            names.append(name); a('s_memrealtime s[100:101]'); a.wait_lg(); a(f'v_writelane_b32 {vST}, s100, 1')
    elif PROF and ('only' not in OPT or name in OPT['only'].split(',')):
        k = len(names); names.append(name)
        a('s_memrealtime s[100:101]' if '--rt' in sys.argv else 's_memtime s[100:101]'); a.wait_lg(); a(f'v_writelane_b32 {vST}, s100, {k}')
def srd(dst, p, nbytes):
    d = int(dst[2:dst.index(':')])
    return f's_mov_b32 s{d}, s{P[p]}\ns_mov_b32 s{d+1}, s{P[p]+1}\ns_mov_b32 s{d+2}, {nbytes}\ns_mov_b32 s{d+3}, 0x00020000'
def vr(b, n): return f'v[{b}:{b+n-1}]'
def ar(b, n): return f'a[{b}:{b+n-1}]'
slow = []
def poll_issue(vaddr, vtmp): a(f'buffer_load_dword {vtmp}, {vaddr}, {WS_SRD}, 0 offen sc1')
def poll_check(vaddr, vtmp):
    k = len(slow); slow.append((vaddr, vtmp))
    a(f'v_cmp_ne_u32 vcc, {sTAG}, {vtmp}')
    a(f's_cbranch_vccnz L_spin{k}')
    a.label(f'L_back{k}')
def publish(sflagoff):
    a('s_mov_b64 exec, 1')
    a(f'buffer_store_dword v5, v6, {WS_SRD}, {sflagoff} offen sc1')
    a('s_mov_b64 exec, -1')
def weave(main, sides):
    sides = sorted(enumerate(sides), key=lambda t: (t[1][0], t[0]))
    si = 0
    while si < len(sides) and sides[si][1][0] < 0:
        sides[si][1][1](); si += 1
    for i, m in enumerate(main):
        m()
        while si < len(sides) and sides[si][1][0] < i + 1:
            sides[si][1][1](); si += 1
    while si < len(sides):
        sides[si][1][1](); si += 1
def spread(items, lo, hi):
    n = len(items)
    return [(lo + (hi - lo) * i / n, f) for i, f in enumerate(items)]
def L(text, tag=None): return lambda: a(text, tag)
def lines(text): return [L(t) for t in text.strip().split('\n') if t.strip()]

vL, v16, vWA, vWB = 'v1', 'v2', 'v3', 'v4'
vK0, vUB_, vMA, vMB, vC0, vC1, vC2, vDS, vFX, vFU, vFW, vFH, vFS, vPT, vPT2, vUG, vUL, vTT = ['v%d' % i for i in range(10, 28)]
ONES = 28
XR, PR = 208, 216
WB, NWS = 208, 6
EA = [232, 233, 234, 235, 236, 237, 238, 239, 240, 241, 242]
vSG, vXG, vW2a, vRR, vSL, vSW, vSR, vUZ = ['v%d' % i for i in range(244, 252)]

MAPB = int(opt('mapb', 1))
sT0, sT1 = 's12', 's13'

if PROF: a('s_memrealtime s[100:101]' if (LITE or '--rt' in sys.argv) else 's_memtime s[100:101]')
a('s_cmp_ge_u32 s2, 256\ns_cbranch_scc1 L_end')
a('s_load_dwordx16 s[16:31], s[0:1], 0\ns_load_dwordx16 s[32:47], s[0:1], 64\ns_load_dwordx2 s[48:49], s[0:1], 128')
a(f'''s_getpc_b64 s[12:13]
s_lshr_b32 {sJ}, {sB}, 3
v_and_b32 v160, 7, v0
v_lshl_add_u32 v160, {sJ}, 3, v160
v_lshlrev_b32 v160, 7, v160
v_lshrrev_b32 v2, 6, v0
global_load_dword v255, v160, s[12:13]
v_readfirstlane_b32 {sW}, v2
v_and_b32 {vL}, 63, v0
s_and_b32 {sXCD}, {sB}, 7
s_lshl_b32 s12, {sXCD}, 5
s_add_u32 {sBPP}, s12, {sJ}
v_lshlrev_b32 {v16}, 4, {vL}
s_lshl2_add_u32 {sFLN}, {sBPP}, {sW}
s_lshl_b32 {sXL}, {sFLN}, 11
s_lshl_b32 s13, {sFLN}, 7
v_lshl_add_u32 v162, {vL}, 1, s13
s_mov_b32 s54, {2048*512*2}
s_mov_b32 s55, 0x00020000
s_and_b32 {sW1}, {sW}, 1
s_lshr_b32 {sWH}, {sW}, 1
v_mov_b32 v164, {W0}
s_add_u32 {sFLN}, s13, {FL_LN}''')
if MAPB:
    a(f's_and_b32 s12, {sXCD}, 1\ns_and_b32 {sW1N}, {sJ}, 7\ns_lshl3_add_u32 {sRT1}, s12, {sW1N}\ns_lshr_b32 s12, {sXCD}, 1\ns_lshr_b32 s13, {sJ}, 3\ns_lshl2_add_u32 {sCG}, s12, s13\ns_and_b32 s13, {sJ}, 3\ns_lshr_b32 {sCT2}, {sJ}, 2')
else:
    a(f's_lshr_b32 s12, {sXCD}, 1\ns_and_b32 s13, {sJ}, 3\ns_lshl2_add_u32 {sRT1}, s12, s13\ns_lshl_b32 {sW1N}, s13, 1\ns_and_b32 s12, {sXCD}, 1\ns_lshr_b32 {sCT2}, {sJ}, 2\ns_lshl3_add_u32 {sCG}, s12, {sCT2}')
a(f's_lshl2_add_u32 {sRT2}, {sXCD}, s13\ns_lshl2_add_u32 {sU}, {sB}, {sW}')
for t3 in range(3):
    a(f'v_add_u32 v166, {64*t3}, {vL}\nv_mul_u32_u24 v167, 5462, v166\nv_lshrrev_b32 v167, 16, v167\nv_mul_u32_u24 v168, {2752 - 192}, v167')
    a(f'v_lshl_add_u32 v{7+t3}, {vL}, 4, v168')
a(f'''s_mul_i32 s12, {sW}, {128*2752}
s_mul_i32 s15, {sCG}, 192
s_add_u32 {sW1GB}, s12, s15
s_mul_i32 {sW1LB}, {sW}, {24*1024}
s_add_u32 {sW1LB}, {sW1LB}, {L_W1}
s_mov_b32 s62, {512*1376*2}
s_mov_b32 s63, 0x00020000''')
a.wait_lg()
if PROF:
    names.append('start'); a(f'v_writelane_b32 {vST}, s100, 0')
stamp('kernarg')
a(f's_mov_b32 s52, s16\ns_mov_b32 s53, s17')
a(f'buffer_load_dwordx4 {vr(XR, 4)}, {v16}, {X_SRD}, {sXL} offen')
a(f'buffer_load_dwordx4 {vr(XR+4, 4)}, {v16}, {X_SRD}, {sXL} offen offset:1024')
a('s_mov_b32 s60, s36\ns_mov_b32 s61, s37')
def w1_group(restore=None):
    a(f's_mul_i32 {sW1G}, {sW1N}, {16*2752}\ns_mul_i32 {sW1L}, {sW1N}, 3072\ns_add_u32 {sW1G}, {sW1G}, {sW1GB}\ns_add_u32 m0, {sW1L}, {sW1LB}\ns_add_u32 {sW1N}, {sW1N}, 1')
    for t3 in range(3): a(f'buffer_load_dwordx4 v{7+t3}, {W1_SRD}, {sW1G} offen offset:{1024*t3} lds', tag='w1')
    a(f's_and_b32 {sW1N}, {sW1N}, 7')
    if restore: a(f's_mov_b32 m0, {restore}')
NG1 = int(opt('ng1', 3))
a(srd(WS_SRD, 'ws', 0x10000000) + f'\nbuffer_load_dword v5, v164, {WS_SRD}, 0 offen sc1')
for i, n in enumerate(['are', 'aim', 'bre', 'bim', 'cre', 'cim']): a(f'global_load_ushort v{PR+i}, v162, {ptr(n)}')
a(f's_add_u32 s34, {sW1N}, 7\ns_and_b32 s34, s34, 7\ns_mul_i32 s34, s34, 3072\ns_add_u32 {sW2UL}, s34, {sW1LB}')
for g in range(NG1): w1_group()
a(f'v_lshlrev_b32 v166, 1, {vL}\nv_mov_b32 v167, 0x100000\nv_cmp_gt_u32 vcc, 32, {vL}\ns_lshl1_add_u32 s12, {sCT2}, {sW1}\ns_lshl_b32 {sDO}, s12, 6\nv_cndmask_b32 v166, v167, v166, vcc')
a(srd(B1_SRD, 'b1', 1376*2))
a(srd(B2_SRD, 'b2', 1024) + '\nv_mov_b32 v230, v166\ns_mov_b32 s27, s15')
LATE = [L(f'buffer_load_ushort a{240+4*ct}, v230, {B1_SRD}, s27 offen offset:{64*ct}') for ct in range(3)] + [L(f'buffer_load_ushort a252, v230, {B2_SRD}, {sDO} offen')]
DEFER = int(opt('defer', 1))
if not DEFER:
    for f in LATE: f()
a(f'''v_lshrrev_b32 v165, 3, {vL}
v_lshlrev_b32 v165, 10, v165
v_and_b32 v166, 7, {vL}
v_lshlrev_b32 {vSL}, 4, v166
v_lshl_add_u32 {vSL}, v165, 2, {vSL}
v_bfe_u32 v174, {vL}, 4, 1
v_lshlrev_b32 v167, 2, v174
v_xor_b32 v166, v166, v167
v_lshl_add_u32 v231, v166, 4, v165''')
a(srd(W2_SRD, 'w2', 1376*512*2))
a(f'''s_lshr_b32 s34, {sU}, 3
s_and_b32 s35, {sU}, 7
s_lshl_b32 s12, s34, 14
s_lshl_b32 s13, s35, 7
s_add_u32 s28, s12, s13
s_add_u32 s29, s28, {8192-1024}''')
def w2u():
    a(f's_mov_b32 m0, {sW2UL}')
    a(f'buffer_load_dwordx4 v231, {W2_SRD}, s28 offen lds', tag='w2u')
    a(f'buffer_load_dwordx4 v231, {W2_SRD}, s29 offen offset:1024 lds', tag='w2u')
if not DEFER: w2u()
stamp('issued')
a(f'''s_mul_i32 s12, {sW}, 2080
s_add_u32 s12, s12, {L_LNS}
v_add_u32 v168, s12, {v16}
v_and_b32 v171, 7, v0
v_lshrrev_b32 v172, 3, v0
v_mul_u32_u24 v169, 1040, v171
v_lshl_add_u32 v169, v172, 4, v169
v_add_u32 v169, {L_LNS}, v169
v_lshlrev_b32 v172, 9, v172
v_lshl_add_u32 v170, v171, 4, v172
s_lshr_b32 s12, {sBPP}, 2
s_lshl_b32 s12, s12, 8
s_and_b32 s13, {sBPP}, 3
s_add_u32 s12, s12, s13
s_lshl_b32 {sXS}, s12, 7
s_add_u32 {sXS1}, {sXS}, 16384
s_mul_i32 s35, s35, 88
s_add_u32 s12, s35, s34
s_lshl_b32 s12, s12, 11
s_add_u32 s12, s12, {W2T}
s_cmp_lt_u32 {sU}, 704
s_cselect_b32 {sW2S}, s12, {DROP}
s_lshl_b32 {sFW}, {sU}, 7
s_add_u32 {sFW}, {sFW}, {FL_W}
s_mul_i32 {sTM}, {sWH}, {TABC}
s_lshl_b32 s14, {sW1}, 8
v_lshrrev_b32 v160, 5, {vL}
v_bfe_u32 v161, {vL}, 2, 2
v_lshl_add_u32 v173, v160, 3, v161
v_mul_u32_u24 v173, 192, v173
v_and_b32 v175, 3, {vL}
v_lshlrev_b32 v175, 3, v175
v_lshl_add_u32 v175, v174, 5, v175
v_add_u32 v173, v173, v175
v_add_u32 {vWA}, {L_W1}, v173
v_add_u32 {vWB}, {L_W1+49152}, v173
v_lshl_add_u32 v173, v160, 2, v161
v_lshlrev_b32 v173, 7, v173
v_add_u32 {vSR}, v173, v175
v_lshlrev_b32 v174, 1, v174
v_bfe_u32 v175, {vL}, 1, 1
v_add_u32 v174, v174, v175
v_bfe_u32 v175, {vL}, 3, 1
v_lshlrev_b32 v175, 2, v175
v_xor_b32 v174, v174, v175
v_lshl_add_u32 v173, v174, 4, v173
v_and_b32 v174, 1, {vL}
v_lshl_add_u32 v173, v174, 3, v173
v_add_u32 v252, {sW2UL}, v173
v_xor_b32 v253, 64, v252
s_lshl2_add_u32 s12, {sRT1}, {sW}
s_lshl_b32 {sXA}, s12, 15
s_lshl_b32 s13, s12, 11
s_add_u32 s13, s13, {FL_LN}
v_and_b32 {vMA}, 15, {vL}
v_lshl_add_u32 {vFX}, {vMA}, 7, s13
v_mov_b32 v6, 0
v_mov_b32 v{ONES}, 0x3f80
v_mov_b32 v{ONES+1}, 0
v_mov_b32 v{ONES+2}, 0
v_mov_b32 v{ONES+3}, 0
v_lshrrev_b32 {vMB}, 4, {vL}
v_or_b32 {vDS}, {vMA}, {vMB}
v_or_b32 {vDS}, {sW1}, {vDS}
s_add_u32 {sTM}, {sTM}, s14''')
for i in range(16):
    if i % 4: a(f'v_accvgpr_write_b32 a{240+i}, 0')
a(srd(OUT_SRD, 'out', 2048*512*2))
stamp('precomp')

a('s_mov_b32 s12, 0x3f803f80')
A0 = 176
for k in range(4):
    for r in range(2):
        x = f'v{XR+4*r+k}'; sa, sq = A0 + r, A0 + 2 + r
        a(f'v_dot2_f32_bf16 v{sa}, {x}, s12, {"0" if k == 0 else f"v{sa}"}')
        a(f'v_dot2_f32_bf16 v{sq}, {x}, {x}, {"0" if k == 0 else f"v{sq}"}')
stamp('xarrive')
a(f's_lshl_b32 s46, {sBPP}, 2\ns_load_dword s47, {ptr("ldt")}, s46\ns_load_dword s46, {ptr("dsk")}, s46')
unp_items = []
for r in range(2):
    for k in range(4):
        x = f'v{XR+4*r+k}'; t = 184 + 8*r + 2*k
        unp_items += lines(f'v_lshlrev_b32 v{t}, 16, {x}\nv_and_b32 v{t+1}, 0xffff0000, {x}')
for mod in ['row_shr:1 row_mask:0xf bank_mask:0xf bound_ctrl:0', 'row_shr:2 row_mask:0xf bank_mask:0xf bound_ctrl:0',
            'row_shr:4 row_mask:0xf bank_mask:0xf bound_ctrl:0', 'row_shr:8 row_mask:0xf bank_mask:0xf bound_ctrl:0',
            'row_bcast:15 row_mask:0xa bank_mask:0xf', 'row_bcast:31 row_mask:0xc bank_mask:0xf']:
    for r in range(A0, A0 + 4): a(f'v_add_f32_dpp v{r}, v{r}, v{r} {mod}')
M, Q = vr(A0, 2), vr(A0 + 2, 2); q0, q1, m0_, m1_ = f'v{A0+2}', f'v{A0+3}', f'v{A0}', f'v{A0+1}'
def rnd2(lo, hi, t): return lines(f'v_cvt_pk_bf16_f32 {t}, {lo}, {hi}\nv_lshlrev_b32 {lo}, 16, {t}\nv_and_b32 {hi}, 0xffff0000, {t}')
St = [L(f'v_readlane_b32 s{12+r}, v{A0+r}, 63') for r in range(4)] + [L(f'v_mov_b32 v180, {fbits(1/512)}')]
St += [L(f'v_mul_f32 v{A0+r}, s{12+r}, v180') for r in range(4)]
St += lines(f'v_pk_fma_f32 {Q}, {M}, {M}, {Q} neg_lo:[1,0,0] neg_hi:[1,0,0]\nv_max_f32 {q0}, 0, {q0}\nv_max_f32 {q1}, 0, {q1}')
St += rnd2(q0, q1, 'v181') + lines(f'v_add_f32 {q0}, {fbits(1e-5)}, {q0}\nv_add_f32 {q1}, {fbits(1e-5)}, {q1}') + rnd2(q0, q1, 'v181')
St += lines(f'v_sqrt_f32 {q0}, {q0}\nv_sqrt_f32 {q1}, {q1}') + rnd2(m0_, m1_, 'v180') + rnd2(q0, q1, 'v181')
St += lines(f'v_rcp_f32 {q0}, {q0}\nv_rcp_f32 {q1}, {q1}')
weave(St, spread(unp_items, 4, len(St)))
a(f'v_readfirstlane_b32 {sTAG}, v5')
a(f'v_pk_mul_f32 {M}, {M}, {Q} neg_lo:[1,0] neg_hi:[1,0]')
for r in range(2):
    sel = 'op_sel:[0,0,0] op_sel_hi:[1,0,0]' if r == 0 else 'op_sel:[0,1,1] op_sel_hi:[1,1,1]'
    for k in range(4):
        t = 184 + 8*r + 2*k; a(f'v_pk_fma_f32 {vr(t, 2)}, {vr(t, 2)}, {Q}, {M} {sel}')
    for k in range(4):
        t = 184 + 8*r + 2*k; a(f'v_cvt_pk_bf16_f32 v{XR+4*r+k}, v{t}, v{t+1}')
    a(f'ds_write_b128 v168, {vr(XR+4*r, 4)} offset:{1040*r}')
a(f's_mul_i32 {sTAG}, {sTAG}, 0x9E3779B1\ns_add_u32 {sTAG}, {sTAG}, 0x7F4A7C15')
stamp('lncomp')
a.barrier()
a('ds_read_b128 v[176:179], v169\nds_read_b128 v[180:183], v169 offset:512')
a(f'v_mov_b32 v5, {sTAG}')
a(f'buffer_store_dwordx4 v[176:179], v170, {WS_SRD}, {sXS} offen sc1', tag='ln')
a(f'buffer_store_dwordx4 v[180:183], v170, {WS_SRD}, {sXS1} offen sc1', tag='ln')
a(f's_mov_b32 m0, {sTM}')
stamp('lnstores')

T = []
def cmul(d, x, y):
    T.append(L(f'v_pk_mul_f32 {vr(d,2)}, {vr(x,2)}, {vr(y,2)} op_sel:[0,0] op_sel_hi:[0,1]'))
    T.append(L(f'v_pk_fma_f32 {vr(d,2)}, {vr(x,2)}, {vr(y,2)}, {vr(d,2)} op_sel:[1,1,0] op_sel_hi:[1,0,1] neg_lo:[1,0,0]'))
T.append(L(f's_lshl_b32 s12, {sWH}, 4\ns_lshr_b32 s47, s47, s12\ns_lshl_b32 s47, s47, 16\ns_lshr_b32 s46, s46, s12\ns_lshl_b32 s46, s46, 16\nv_mov_b32 v{PR+6}, s47\nv_mov_b32 v{PR+7}, s46'))
for i in range(6): T.append(L(f'v_lshlrev_b32 v{PR+i}, 16, v{PR+i}'))
are, aim, bre, bim, cre, ldt, dsk = PR, PR+1, PR+2, PR+3, PR+4, PR+6, PR+7
T += lines(f'''v_mul_f32 v{ldt}, {fbits(LOG2E)}, v{ldt}
v_exp_f32 v{ldt}, v{ldt}''')
T.append(L(f'v_cmp_eq_u32 vcc, 0, {vDS}\nv_cvt_pk_bf16_f32 v{ldt}, v{ldt}, v{ldt}\nv_lshlrev_b32 v{ldt}, 16, v{ldt}\nv_cndmask_b32 {vDS}, 0, v{dsk}, vcc'))
T += lines(f'''v_mul_f32 v{are}, v{ldt}, v{are}
v_mul_f32 v{aim}, v{ldt}, v{aim}
v_mul_f32 v{bre}, v{ldt}, v{bre}
v_mul_f32 v{bim}, v{ldt}, v{bim}
v_mul_f32 v{are}, {fbits(LOG2E)}, v{are}
v_mul_f32 v{aim}, {fbits(0.15915494309189535)}, v{aim}''')
G0, E1, E8, E256, E512, E1024, E32 = 160, 162, 164, 166, 168, 170, 172
cmul(G0, cre, bre)
ls = [(E1, 1.0), (E8, 8.0), (E256, 256.0)]
for i, (d, l) in enumerate(ls): T += lines(f'v_mul_f32 v{224+2*i}, {fbits(l)}, v{aim}\nv_mul_f32 v{225+2*i}, {fbits(l)}, v{are}')
for i, (d, l) in enumerate(ls): T += lines(f'v_fract_f32 v{224+2*i}, v{224+2*i}\nv_exp_f32 v{225+2*i}, v{225+2*i}')
for i, (d, l) in enumerate(ls): T += lines(f'v_cos_f32 v{d}, v{224+2*i}\nv_sin_f32 v{d+1}, v{224+2*i}')
for i, (d, l) in enumerate(ls): T += lines(f'v_mul_f32 v{d}, v{225+2*i}, v{d}\nv_mul_f32 v{d+1}, v{225+2*i}, v{d+1}')
tmpc = [224, 225, 226, 227]; tci = [0]
def put(row, x, neg):
    t = tmpc[tci[0] % 4]; tci[0] += 1
    T.append(L(f'v_cvt_pk_bf16_f32 v{t}, v{x}, {"-" if neg else ""}v{x+1}'))
    T.append(L(f'ds_write_addtid_b32 v{t} offset:{row*528}'))
T += lines(f'ds_write_addtid_b32 v{ONES}')
Pa = [174, 176, 178, 180]; Pb = [182, 184, 186, 188]
cmul(Pa[2], E8, E8); put(1, E8, False)
cmul(E512, E256, E256); put(32, G0, True)
cmul(Pa[3], Pa[2], E8); cmul(E32, Pa[2], Pa[2]); put(2, Pa[2], False)
cmul(E1024, E512, E512)
cmul(Pb[1], E8, E32); put(3, Pa[3], False); cmul(Pb[2], Pa[2], E32); put(4, E32, False); cmul(Pb[3], Pa[3], E32)
put(5, Pb[1], False); put(6, Pb[2], False); put(7, Pb[3], False)
cur = [E32, Pb[1], Pb[2], Pb[3]]
G = {0: G0}; free = [190, 192, 194, 196, 198, 208, 210, 212, 214, 216, 218, 220, 222]
hi_jobs = []
DEAD = {2: [1], 4: [3], 6: [5], 7: [7], 258: [258, 2], 262: [262, 6], 516: [516, 4], 772: [772, 260], 1280: [1280, 256], 1536: [1536, 512], 1792: [1792, 768]}
def hj(h, src, e, row):
    def f():
        G[h] = free.pop(0); cmul(G[h], G[src], e); put(row, G[h], True)
        for dead in DEAD.get(h, []): free.append(G[dead])
    hi_jobs.append(f)
for h in range(1, 8): hj(h, h - 1, E1, 32 + h)
for i, h in enumerate([0, 2, 4, 6]): hj(256 + h, h, E256, 40 + i)
for i, (h, src) in enumerate([(512, 0), (516, 4), (768, 256), (772, 260)]): hj(h, src, E512, 44 + i)
for i, (h, src) in enumerate([(1024, 0), (1280, 256), (1536, 512), (1792, 768), (2048, 1024)]): hj(h, src, E1024, 48 + i)
for q in range(2, 8):
    dst = Pa if q % 2 == 0 else Pb
    for i in range(4):
        cmul(dst[i], cur[i], E32); put(4*q+i, dst[i], False)
        if hi_jobs: hi_jobs.pop(0)()
    cur = list(dst)
assert not hi_jobs
nT = len(T)
W2R = 200
def w2u_read():
    a.wait_vm('w2u')
    for sl, base in enumerate(['v252', 'v253']):
        for q in range(2): a(f'ds_read_b64_tr_b16 {vr(W2R+4*sl+2*q, 2)}, {base} offset:{q*1024}', tag='w2r')
def w2u_store(i):
    def f():
        a(f'buffer_store_dwordx4 {vr(W2R+4*i, 4)}, {v16}, {WS_SRD}, {sW2S} offen offset:{1024*i} sc1', tag='w2s')
    return f
def pub_ln():
    stamp('pre_publn'); a.wait_vm('ln'); stamp('ln_landed'); publish(sFLN)
PRE1 = lines(f'''s_mul_i32 {sCTB}, {sWH}, {CTC}
s_add_u32 {sCTB}, {sCTB}, {L_CT}
s_lshl_b32 s12, {sW1}, 6
v_add_u32 {vTT}, s12, {vL}
v_lshlrev_b32 {vSG}, 5, {vMA}
v_lshlrev_b32 v173, 4, {vMB}
v_sub_u32 v174, v173, {vSG}
v_lshl_add_u32 {vSG}, {vMB}, 3, {vSG}
s_mul_i32 s12, {sWH}, {UTC}
s_lshl_b32 s13, {sW1}, 8
s_add_u32 s12, s12, s13
s_add_u32 s12, s12, {L_UT+480}
v_add_u32 {vUB_}, s12, v174
v_and_b32 v174, 1, {vL}
v_mul_u32_u24 v174, {KTC}, v174
v_bfe_u32 v175, {vL}, 1, 3
v_lshl_add_u32 v174, v175, 2, v174
s_mul_i32 {sKM}, {sWH}, {2*KTC}
s_add_u32 {sKM}, {sKM}, s13
v_add3_u32 {vK0}, v174, v173, {sKM}
s_lshl_b32 s13, {sW1}, 4
v_add_u32 v160, s13, {vMA}
v_mov_b32 v161, {vMB}
v_mul_u32_u24 {vMA}, 528, {vMA}
s_mul_i32 s12, {sWH}, {TABC}
v_add3_u32 {vMA}, {vMA}, v173, s12
s_mul_i32 s13, {sW1}, {16*528}
v_add_u32 {vMB}, s13, {vMA}
v_lshlrev_b32 {vC0}, 3, v160
v_lshl_add_u32 {vC0}, v161, 2, {vC0}
v_lshlrev_b32 v173, 2, v160
v_add_u32 v173, 0x100, v173
v_cmp_eq_u32 vcc, 2, v161
v_lshlrev_b32 v174, 1, v160
v_add_u32 v174, 0x180, v174
v_cndmask_b32 {vC0}, {vC0}, v173, vcc
v_cmp_eq_u32 vcc, 3, v161
v_mov_b32 v173, 2
v_mov_b32 v175, 64
v_cndmask_b32 {vC0}, {vC0}, v174, vcc
v_cndmask_b32 v173, v173, v175, vcc
v_add_u32 {vC1}, {vC0}, v173
v_lshl_add_u32 {vC0}, {vC0}, 1, {sCTB}
v_lshl_add_u32 {vC1}, {vC1}, 1, {sCTB}
v_lshl_add_u32 {vC2}, v161, 7, v160
v_add_u32 {vC2}, 0x200, {vC2}
v_lshl_add_u32 {vC2}, {vC2}, 1, {sCTB}''')
xl_state = [0]
def xload():
    ks = xl_state[0]; xl_state[0] += 1
    a(f'buffer_load_dwordx4 {vr(32+4*ks, 4)}, {v16}, {WS_SRD}, {sXA} offen offset:{(ks % 4)*1024} sc1')
    if ks % 4 == 3: a(f's_add_u32 {sXA}, {sXA}, 4096')
sides = []
sides.append((nT * opt('w2rd', .9), w2u_read))
sides.append((nT * opt('publn', .6), pub_ln))
sides.append((nT * opt('w2st', .94), w2u_store(0)))
sides.append((nT * opt('w2st', .94) + 12, w2u_store(1)))
if DEFER:
    sides.append((nT * opt('late', .4), lambda: (w2u(), a(f's_mov_b32 m0, {sTM}'))))
    sides += spread(LATE, nT * opt('late', .4) + 4, nT * opt('late', .4) + 20)
NGT = int(opt('ngt', 2))
sides += spread([lambda: w1_group(sTM)] * NGT, nT * opt('w1beg', .55), nT * opt('w1end', .95))
NX1 = int(opt('nx1', 3)); NX2 = int(opt('nx2', 10))
def pub_w():
    a.wait_vm('w2s'); publish(sFW)
weave(T, sides)
stamp('t_end')
EAd = lines(f'''v_lshlrev_b32 v254, 2, {vTT}
v_add_u32 v{EA[1]}, {sCTB}, v254
v_subrev_u32 v{EA[0]}, 2, v{EA[1]}
v_mov_b32 v253, {sCTB}''')
EAd.append(L(f'v_cmp_eq_u32 vcc, 0, {vTT}\nv_add_u32 v253, 2048, v253\nv_lshlrev_b32 v254, 1, {vTT}\nv_cndmask_b32 v{EA[0]}, v{EA[0]}, v253, vcc'))
EAd += lines(f'v_cvt_f32_u32 v254, v254\ns_sub_u32 s14, {sCTB}, {2*(0x4300-128)}')
for si, it in enumerate([1, 2, 4]):
    b0, b1, b2 = EA[2+3*si], EA[3+3*si], EA[4+3*si]
    EAd += lines(f'''v_add_f32 v{b0}, {fbits(256.0*it-1)}, v254
v_add_f32 v{b1}, {fbits(256.0*it)}, v254
v_add_f32 v{b2}, {fbits(256.0*it+1)}, v254
v_cvt_pk_bf16_f32 v{b1}, v{b0}, v{b1}
v_cvt_pk_bf16_f32 v{b2}, v{b2}, v{b2}
v_and_b32 v{b0}, 0xffff, v{b1}
v_lshrrev_b32 v{b1}, 16, v{b1}
v_lshrrev_b32 v{b2}, 16, v{b2}
v_lshl_add_u32 v{b0}, v{b0}, 1, s14
v_lshl_add_u32 v{b1}, v{b1}, 1, s14
v_lshl_add_u32 v{b2}, v{b2}, 1, s14''')

F0 = lines(f'''v_lshrrev_b32 v252, 5, {vL}
v_and_b32 v253, 31, {vL}
v_lshlrev_b32 {vXG}, 10, v253
v_lshl_add_u32 {vXG}, v252, 3, {vXG}
v_lshlrev_b32 {vUG}, 15, v252
v_lshl_add_u32 {vUG}, v253, 4, {vUG}
v_mul_u32_u24 {vUZ}, {UTC}, v252
v_lshl_add_u32 {vUZ}, v253, 4, {vUZ}
s_lshr_b32 s12, {sBPP}, 5
s_and_b32 s12, s12, 3
s_lshl_b32 s13, {sW}, 8
s_add_u32 s12, s12, s13
s_lshl_b32 s12, s12, 7
s_add_u32 s12, s12, {FL_LN}
v_lshl_add_u32 {vFU}, {vL}, 9, s12
s_lshl_b32 s12, {sW}, 19
s_lshr_b32 s13, {sBPP}, 2
s_lshl_b32 s13, s13, 9
s_add_u32 s12, s12, s13
s_and_b32 s13, {sBPP}, 3
s_lshl2_add_u32 {sUA}, s13, s12
s_lshl_b32 s12, {sW}, 10
s_sub_u32 s12, {L_UT+4094-896}, s12
v_lshlrev_b32 {vUL}, 1, {vL}
v_sub_u32 {vUL}, s12, {vUL}''')
FE = EAd + lines(f'''s_lshl2_add_u32 s12, {sRT1}, {sW}
s_mul_i32 s12, s12, 86
s_mul_i32 s13, {sCG}, 6
s_add_u32 s12, s12, s13
s_lshl_b32 s12, s12, 10
s_add_u32 {sHST0}, s12, {HH}
s_lshl_b32 s12, {sW1}, 12
s_lshl_b32 s13, {sWH}, 6
s_add_u32 s12, s12, s13
s_add_u32 s12, s12, {L_SST}
v_add_u32 {vSR}, s12, {vSR}
s_lshl1_add_u32 s12, {sBPP}, {sWH}
s_lshl1_add_u32 s12, s12, {sW1}
s_lshl_b32 s12, s12, 11
s_add_u32 {sSST}, s12, {SB}''')
F1 = lines(f'''s_mul_i32 s12, {sW}, 176
s_add_u32 s12, s12, {sCT2}
s_lshl_b32 s12, s12, 7
s_add_u32 s12, s12, {FL_W}
v_min_u32 {vFW}, 21, {vL}
v_lshl_add_u32 {vFW}, {vFW}, 10, s12''')
F2 = lines(f'''s_mul_i32 s12, {sCT2}, 88
s_mul_i32 s13, {sW}, 22
s_add_u32 s12, s12, s13
s_lshl_b32 s12, s12, 11
s_add_u32 {sW2A}, s12, {W2T}
s_lshl_b32 s12, {sW1}, 10
v_add_u32 {vW2a}, s12, {v16}
s_lshl4_add_u32 s12, {sRT1}, {sCG}
s_lshl2_add_u32 s12, s12, {sW}
s_lshl_b32 s12, s12, 7
s_add_u32 {sFH}, s12, {FL_H}
s_add_u32 {sHST1}, {sHST0}, 2048
s_add_u32 {sHST2}, {sHST0}, 4096''')
F2.append(L(f's_cmp_lt_u32 {sCG}, 15\ns_cselect_b32 {sHST0}, {sHST0}, {DROP}'))
F2.append(L(f's_cmp_lt_u32 {sCG}, 14\ns_cselect_b32 {sHST1}, {sHST1}, {DROP}\ns_cselect_b32 {sHST2}, {sHST2}, {DROP}'))
F3 = lines(f'''s_mul_i32 s14, {sW}, {11*21846}
s_lshr_b32 s14, s14, 16
s_lshr_b32 s12, {sRT2}, 1
s_lshl_b32 s12, s12, 5
s_and_b32 s13, {sRT2}, 1
s_add_u32 s12, s12, s13
s_lshl_b32 s12, s12, 8
s_add_u32 s12, s12, {FL_H}
v_lshrrev_b32 v160, 1, {vL}
v_min_u32 v160, 4, v160
v_add_u32 v160, s14, v160
v_min_u32 v160, 14, v160
v_and_b32 {vFH}, 1, {vL}
v_lshl_add_u32 v160, v160, 2, {vFH}
v_lshl_add_u32 {vFH}, v160, 7, s12
s_lshl1_add_u32 s14, {sRT2}, {sWH}
s_xor_b32 s13, s14, 1
s_mul_i32 s14, s14, 86
s_mul_i32 s13, s13, 86
s_mul_i32 s12, {sW}, 22
s_add_u32 s12, s12, {HH >> 10}
s_add_u32 s14, s14, s12
s_add_u32 s13, s13, s12
s_lshl_b32 {sHA0}, s14, 10
s_lshl_b32 {sHA1}, s13, 10
s_lshl_b32 s12, {sW}, 12
s_add_u32 s12, s12, {L_RED}
v_add_u32 {vRR}, s12, {v16}
s_lshl2_add_u32 s12, {sBPP}, {sW}
s_lshl_b32 s12, s12, 7
s_add_u32 {sFS}, s12, {FL_S}''')
F4 = lines(f'''s_lshl_b32 s14, {sCT2}, 7
s_lshr_b32 s13, {sRT2}, 4
s_add_u32 s14, s14, s13
s_lshl_b32 s14, s14, 7
s_add_u32 s14, s14, {FL_S}
v_lshl_add_u32 {vFS}, {vL}, 8, s14
s_lshl3_add_u32 s14, {sCT2}, {sW}
s_lshl_b32 s14, s14, 15
s_lshl_b32 s13, {sRT2}, 7
s_add_u32 s14, s14, s13
s_add_u32 {sSA}, s14, {SB}
s_add_u32 {sSA1}, {sSA}, {32*4096}
s_lshl_b32 s14, {sW}, 10
s_add_u32 s14, s14, {L_SST}
v_add_u32 {vSW}, s14, {v16}''')
FXS = lines(f'''s_lshl_b32 s12, {sRT2}, 16
s_lshl_b32 s13, {sWH}, 15
s_add_u32 s12, s12, s13
s_add_u32 {sXO}, s12, {sDO}''')
PRE1 = PRE1 + F0 + F1 + FE + F2 + F3 + F4 + FXS
NGR = 8 - NG1 - NGT
XP = int(opt('xp', 2))
nP = len(PRE1); xc = nP * opt('xchk', .6)
sd = spread([w1_group] * NGR, 0, nP * opt('w1r', .4)) + [(nP * opt('xpoll', .3), lambda: poll_issue(vFX, vPT))]
sd.append((xc, lambda: (pub_w(), stamp('pre_xchk'), poll_check(vFX, vPT), stamp('xready'))))
sd += spread([xload] * (NX1 + NX2), xc + 0.5, nP)
weave(PRE1, sd)
a.wait_vm('w1')
stamp('tables')
a.barrier()

KR = 32
KD = 208
def krd(kk):
    return [L(f'ds_read_b128 {vr(KR+12*kk, 4)}, {vMA} offset:{32*528+64*kk}'), L(f'ds_read_b128 {vr(KR+12*kk+8, 4)}, {vMB} offset:{64*kk}'), L(f'ds_read_b128 {vr(KR+12*kk+4, 4)}, {vMA} offset:{48*528+64*kk}')]
def kmf(k2):
    return [L(f'v_mfma_f32_16x16x32_bf16 {vr(KD, 4)}, {vr(KR+12*k2, 4)}, {vr(KR+12*k2+8, 4)}, {"0" if k2 == 0 else vr(KD, 4)}'),
            L(f'v_mfma_f32_16x16x32_bf16 {vr(KD+4, 4)}, {vr(KR+12*k2+4, 4)}, {vr(KR+12*k2+8, 4)}, {"0" if k2 == 0 else vr(KD+4, 4)}')]
KA = int(opt('ka', 18)); KB_ = 32 - KA
order = [(ks, ct) for ks in range(KA) for ct in range(3)] + [(ks, ct) for ct in range(3) for ks in range(KA, 32)]
def wread(n):
    ks, ct = order[n]
    base = vWA if ks < 16 else vWB; o = (ks % 16) * 3072; rb = WB + 4 * (n % NWS)
    for q in range(2): a(f'ds_read_b64_tr_b16 {vr(rb+2*q, 2)}, {base} offset:{o+768*q+64*ct}', tag=f'wf{n}')
for n in range(4): wread(n)
Gm = [L(f'v_mfma_f32_32x32x16_bf16 {vr(160+16*ct, 16)}, {ar(240+4*ct, 4)}, {vr(ONES, 4)}, 0') for ct in range(3)]
def g1(n):
    ks, ct = order[n]
    def f():
        if n % 2 == 0: a.wait_lg(f'wf{n+1}')
        a(f'v_mfma_f32_32x32x16_bf16 {vr(160+16*ct, 16)}, {vr(WB+4*(n % NWS), 4)}, {vr(32+4*ks, 4)}, {vr(160+16*ct, 16)}')
    return f
Gm += [g1(n) for n in range(96)]
sides = []
for n in range(4, 96):
    sides.append((3 + n - 5 + 0.1, (lambda n=n: wread(n))))
XSP = opt('xsp', 2.0)
for i in range(32 - NX1 - NX2): sides.append((XSP*i + 0.5, xload))
GD = ['v%d' % r for r in range(128, 152)]
def gsrc(it, e):
    if it == 0: return (EA[0], 0) if e == 0 else (EA[1], 2 * (e - 1))
    si = {1: 0, 2: 1, 3: 1, 4: 2, 5: 2, 6: 2, 7: 2}[it]; off = {1: 0, 2: 0, 3: 128, 4: 0, 5: 64, 6: 128, 7: 192}[it]
    return (EA[2 + 3*si + e], off)
def gather(it):
    return [L(f'ds_read_u16 {GD[3*it+e]}, v{gsrc(it, e)[0]} offset:{gsrc(it, e)[1]}') for e in range(3)]
def pack(it):
    b0, b1, b2 = GD[3*it], GD[3*it+1], GD[3*it+2]
    return lines(f'v_lshl_or_b32 {b0}, {b1}, 16, {b0}\nv_lshl_or_b32 {b1}, {b2}, 16, {b1}\nds_write_addtid_b32 {b0} offset:{28+512*it}\nds_write_addtid_b32 {b1} offset:{KTC+28+512*it}')
EX = []
for it in range(8): EX += gather(it)
EXP = []
for it in range(8): EXP += pack(it)
EX += lines(f'ds_write_b64 {vUZ}, v[30:31] offset:{L_UT+4096}\nds_write_b64 {vUZ}, v[30:31] offset:{L_UT+4096+8}')
EX.append(L(f'v_cmp_gt_u32 vcc, 7, {vTT}\ns_and_saveexec_b64 s[14:15], vcc\nds_write_addtid_b32 v6\nds_write_addtid_b32 v6 offset:{KTC}\ns_mov_b64 exec, s[14:15]'))
sides.append((0, L(f's_mov_b32 m0, {sKM}')))
sides.append((40, L(f'v_xor_b32 {vFX}, 0x400, {vW2a}\nv_add_u32 v7, 0x400, {vK0}\nv_add_u32 v8, 0x800, {vK0}\nv_add_u32 v9, 0xc00, {vK0}')))
sides.append((opt('upoll', 24), lambda: poll_issue(vFU, vPT)))
uc = opt('uchk', 46)
sides.append((uc, lambda: poll_check(vFU, vPT)))
def uload(i):
    return L(f'buffer_load_dword a{232+i}, {vUG}, {WS_SRD}, {sUA} offen sc1' + (f'\ns_add_u32 {sUA}, {sUA}, 65536' if i < 7 else ''))
sides += spread([uload(i) for i in range(8)], uc + 0.7, uc + 16.7)
uw = []
for i in range(8):
    uw += lines(f'ds_write_b16 {vUL}, a{232+i} offset:{896-128*i}\nds_write_b16_d16_hi {vUL}, a{232+i} offset:{UTC+896-128*i}')
vW2b = vFX
sides.append((opt('wpoll', 34), lambda: poll_issue(vFW, vPT2)))
wc = opt('wchk', 55)
sides.append((wc, lambda: poll_check(vFW, vPT2)))
w2_state = [0]
def w2load():
    i = w2_state[0]; w2_state[0] += 1
    kk, sl = i // 2, i % 2
    a(f'buffer_load_dwordx4 {ar(8*kk+4*sl, 4)}, {vW2a if sl == 0 else vW2b}, {WS_SRD}, {sW2A} offen offset:{(kk % 2) * 2048} sc1')
    if sl and kk % 2: a(f's_add_u32 {sW2A}, {sW2A}, 4096')
NW2G = int(opt('nw2g', 12))
sides += spread([w2load] * NW2G, wc + 1, 99)
KB = [vK0, 'v7', 'v8', 'v9']
def conv_reads(rr):
    kb = 32 + 64 * (rr % 2); ub = kb + 32; out = []
    for q in range(8): out.append(L(f'ds_read_b128 {vr(ub+4*q, 4)}, {vUB_} offset:{3584-512*q+64*rr}'))
    for q in range(8):
        base = KB[q // 2]; o = 16*rr + 128*(q % 2)
        out.append(L(f'ds_read2_b32 {vr(kb+4*q, 2)}, {base} offset0:{o} offset1:{o+1}'))
        out.append(L(f'ds_read2_b32 {vr(kb+4*q+2, 2)}, {base} offset0:{o+2} offset1:{o+3}'))
    return out
NKR = int(opt('nkr', 5))
for kk in range(NKR): sides += spread(krd(kk), 84 + 3*kk, 87 + 3*kk)
def epi1(ct):
    b = 160 + 16*ct; E = []
    for hf in range(2):
        bb = b + 8 * hf
        for i in range(8): E.append(L(f'v_max_f32 v{bb+i}, 0, v{bb+i}'))
        for i in range(4): E.append(L(f'v_pk_mul_f32 {vr(bb+2*i, 2)}, {vr(bb+2*i, 2)}, {vr(bb+2*i, 2)}'))
        for i in range(4): E.append(L(f'v_cvt_pk_bf16_f32 v{bb+i}, v{bb+2*i}, v{bb+2*i+1}'))
    return E
def hstore(i):
    ct, hf = i // 2, i % 2
    return L(f'buffer_store_dwordx4 {vr(160+16*ct+8*hf, 4)}, {v16}, {WS_SRD}, {[sHST0, sHST1, sHST2][ct]} offen offset:{1024*hf} sc1', tag='h')
sides += spread(epi1(0), 99 - 2*KB_ + 3, 99 - KB_ + 1)
sides += spread(epi1(1), 99 - KB_ + 3, 99)
sides += [(99 - 1.5*KB_ + 3, hstore(0)), (99 - KB_ + 3, hstore(1)), (99 - 3, hstore(2))]
if PROF:
    for p in (3, 27, 51, 67, 83): sides.append((p - 0.05, (lambda p=p: stamp(f'g1_{p}'))))
weave(Gm, sides)
stamp('gemm1')
def pub_h():
    stamp('pre_pubh'); a.wait_vm('h'); stamp('h_landed'); publish(sFH)
Mn = []
for kk in range(8):
    if kk + NKR < 8: Mn += krd(kk + NKR)
    Mn += kmf(kk)
weave(epi1(2), spread(Mn, 2, 30) + spread([w2load] * int(opt('nw2k', 4)), 4, 30) + [(20, hstore(3))])
stamp('epi1')
for f in uw[:8]: pass
a(f'''v_mov_b32 v216, {sCTB}
ds_write_b32 v216, v6 offset:2048
v_add_f32 v{KD}, v{KD}, {vDS}
v_cvt_pk_bf16_f32 v{KD+2}, v{KD+2}, v{KD+3}
v_cvt_pk_bf16_f32 v{KD}, v{KD}, v{KD+1}
v_cvt_pk_bf16_f32 v{KD+4}, v{KD+4}, v{KD+5}
v_cvt_pk_bf16_f32 v{KD+6}, v{KD+6}, v{KD+7}
ds_write_b32 {vC0}, v{KD}
ds_write_b32 {vC1}, v{KD+2}
ds_write_b16 {vC2}, v{KD+4}
ds_write_b16_d16_hi {vC2}, v{KD+4} offset:64
ds_write_b16 {vC2}, v{KD+6} offset:128
ds_write_b16_d16_hi {vC2}, v{KD+6} offset:192''')
hstore(4)()
a.barrier()
stamp('kbar')
XE = 164
FX = []
XEr = [200+4, 200+6, 192+4, 192+6]
FX += [L(f'buffer_load_dwordx2 {vr(XEr[q], 2)}, {vXG}, {X_SRD}, {sXO} offen offset:{16*q}') for q in range(4)]
weave(EX[:24] + uw + EX[24:] + EXP, spread([w2load] * int(opt('nw2e', 7)), 2, 70) + spread(FX, 40, 70) + [(36, hstore(5))])
a.barrier()
stamp('expand')
cr0 = conv_reads(0)
cr0 = cr0[8:10] + cr0[:8] + cr0[10:]
for f in cr0[:12]: f()

CA = 208
Cm = []; sides = []
for rr in range(4):
    kb = 32 + 64 * (rr % 2); ub = kb + 32
    base = len(Cm)
    for q in range(8):
        for ct in range(q, 8):
            c = "0" if (rr == 0 and q == 0) else vr(CA+4*ct, 4)
            Cm.append(L(f'v_mfma_f32_16x16x32_bf16 {vr(CA+4*ct, 4)}, {vr(kb+4*q, 4)}, {vr(ub+4*(ct-q), 4)}, {c}'))
    if rr == 0: sides += spread(cr0[12:], 0, 8)
    if rr + 1 < 4: sides += spread(conv_reads(rr + 1), base + (8 if rr == 0 else 0), base + 34)
nw2 = 44 - w2_state[0]
sides += spread([w2load] * nw2, 1, opt('w2end', 92))
sides.append((opt('pubh', 4), pub_h))
sides.append((2, L(f'v_subrev_u32 v240, {L_RED - L_CX}, {vRR}\nv_xor_b32 v241, 0x1000, v240')))
h_state = [0]
def hreg(kk, sl):
    if kk < 8: return ar(176 + 8*kk + 4*sl, 4)
    if kk < 12: return vr(160 + 8*(kk-8) + 4*sl, 4)
    if kk == 12: return ar(240 + 4*sl, 4)
    if kk == 13: return [vr(192, 4), vr(200, 4)][sl]
    return vr(96 + 8*(kk-14) + 4*sl, 4)
def hload():
    i = h_state[0]; h_state[0] += 1
    kk, sl = i // 2, i % 2
    sreg = sHA0 if sl == 0 else sHA1
    off = (kk % 4) * 1024
    if kk >= 20:
        if kk == 20: a(f's_cmp_eq_u32 {sW}, 3\ns_cselect_b32 s12, 4096, 0\ns_sub_u32 {sreg}, {sreg}, s12')
        a(f'buffer_load_dwordx4 {hreg(kk, sl)}, {v16}, {WS_SRD}, {sreg} offen offset:{off} sc1')
    else:
        a(f'buffer_load_dwordx4 {hreg(kk, sl)}, {v16}, {WS_SRD}, {sreg} offen offset:{off} sc1')
        if kk % 4 == 3: a(f's_add_u32 {sreg}, {sreg}, 4096')
sides.append((opt('hpoll', 62), lambda: poll_issue(vFH, vPT)))
hc = opt('hchk', 96)
sides.append((hc, lambda: (stamp('pre_hchk'), poll_check(vFH, vPT), stamp('hready'))))
sides += spread([hload] * int(opt('nhc', 12)), hc + 1, 144)
weave(Cm, sides)
stamp('conv')
a(f's_cmp_eq_u32 {sW1}, 0\ns_cbranch_scc0 L_cx1')
a.save('cx')
def cx_w(send):
    for i in range(4): a(f'ds_write_b128 v240, {vr(send+4*i, 4)} offset:{1024*i}')
cx_w(CA + 16)
for i in range(4): a(f'v_mov_b32 v{160+4*i}, v{CA+4*i}\nv_mov_b32 v{161+4*i}, v{CA+4*i+1}\nv_mov_b32 v{162+4*i}, v{CA+4*i+2}\nv_mov_b32 v{163+4*i}, v{CA+4*i+3}') if False else None
a('s_branch L_cx2')
a.save('cxa'); a.restore('cx')
a.label('L_cx1')
cx_w(CA)
for i in range(8): a(f'v_pk_mov_b32 {vr(CA+2*i, 2)}, {vr(CA+16+2*i, 2)}, {vr(CA+16+2*i, 2)} op_sel:[0,1]')
a.label('L_cx2'); a.merge('cxa')
NH0 = int(opt('nh0', 3))
for i in range(NH0): hload()
a.barrier()
for i in range(4): a(f'ds_read_b128 {vr(224+4*i, 4)}, v241 offset:{1024*i}')
for i in range(int(opt('nh1', 3))): hload()
assert h_state[0] <= 28
for i in range(8): a(f'v_pk_add_f32 {vr(224+2*i, 2)}, {vr(224+2*i, 2)}, {vr(CA+2*i, 2)}')
for i in range(8): a(f'v_cvt_pk_bf16_f32 v{224+i}, v{224+2*i}, v{225+2*i}')
for i in range(4): a(f'buffer_store_dwordx2 {vr(224+2*i, 2)}, {vSG}, {WS_SRD}, {sSST} offen offset:{512*i} sc1', tag='s')
XU = 208
UX = []
for i in range(8):
    r = XEr[i // 2] + i % 2
    UX += lines(f'v_lshlrev_b32 v{XU+2*i}, 16, v{r}\nv_and_b32 v{XU+2*i+1}, 0xffff0000, v{r}')
stamp('cx')

AC = 32
TAILK = int(opt('tailk', 4))
ord2 = [(kk, s) for kk in range(22 - TAILK) for s in range(4)] + [(kk, s) for s in (1, 2, 3, 0) for kk in range(22 - TAILK, 22)]
Gm = [L(f'v_mfma_f32_32x32x16_bf16 {vr(AC, 16)}, {ar(252, 4)}, {vr(ONES, 4)}, 0')]
for kk, s in ord2:
    c = "0" if (kk == 0 and s > 0) else vr(AC+16*s, 16)
    Gm.append(L(f'v_mfma_f32_32x32x16_bf16 {vr(AC+16*s, 16)}, {ar(8*kk+4*(s & 1), 4)}, {hreg(kk, s >> 1)}, {c}'))
HSP = opt('hsp', 2.0)
sides = [(HSP*i + 0.5, hload) for i in range(44 - h_state[0])]
sides.append((4, L(f'v_xor_b32 v240, 0x1000, {vRR}\nv_xor_b32 v241, 0x2000, {vRR}\nv_xor_b32 v242, 0x3000, {vRR}\ns_mov_b32 s14, {fbits(-LOG2E)}')))
def pub_s():
    a.wait_vm('s'); publish(sFS)
sides.append((opt('pubs', 16), pub_s))
sides.append((opt('spoll', 58), lambda: poll_issue(vFS, vPT)))
SR = 232
sides += spread(UX, 26, 44)
def s_go():
    poll_check(vFS, vPT)
    a(f'buffer_load_dwordx4 {vr(SR, 4)}, {vSL}, {WS_SRD}, {sSA} offen sc1\nbuffer_load_dwordx4 {vr(SR+4, 4)}, {vSL}, {WS_SRD}, {sSA1} offen sc1')
sides.append((opt('schk', 72), s_go))
nG = len(Gm)
for si, s in enumerate((1, 2, 3)):
    end = nG - TAILK * (3 - si)
    lo = end + 1.0
    sides += spread([L(f'ds_write_b128 v{239+s}, {vr(AC+16*s+4*i, 4)} offset:{16384*(s-1)+1024*i}') for i in range(4)], lo, lo + TAILK)
if PROF:
    for p in (71, 74): sides.append((p - 0.05, (lambda p=p: stamp(f'g2_{p}'))))
weave(Gm, sides)
stamp('gemm2')
a(f'ds_write_b128 {vSW}, {vr(SR, 4)}\nds_write_b128 {vSW}, {vr(SR+4, 4)} offset:4096')
a.barrier()
stamp('redbar')
for q in range(4):
    for s in range(3): a(f'ds_read_b128 {vr(96+16*s+4*q, 4)}, {vRR} offset:{16384*s+1024*q}')
for q in range(4): a(f'ds_read_b64_tr_b16 {vr(144+2*q, 2)}, {vSR} offset:{1024*q}')
for q in range(4):
    for s in range(3):
        for i in range(2): a(f'v_pk_add_f32 {vr(AC+4*q+2*i, 2)}, {vr(AC+4*q+2*i, 2)}, {vr(96+16*s+4*q+2*i, 2)}')
    for i in range(2): a(f'v_pk_mul_f32 {vr(160+4*q+2*i, 2)}, {vr(AC+4*q+2*i, 2)}, s[14:15] op_sel_hi:[1,0]')
    for i in range(4*q, 4*q+4): a(f'v_exp_f32 v{160+i}, v{160+i}')
for i in range(8): a(f'v_pk_add_f32 {vr(160+2*i, 2)}, {vr(160+2*i, 2)}, 1.0 op_sel_hi:[1,0]')
for i in range(8):
    a(f'v_rcp_f32 v{160+2*i}, v{160+2*i}\nv_rcp_f32 v{161+2*i}, v{161+2*i}\nv_lshlrev_b32 v{176+2*i}, 16, v{144+i}\nv_and_b32 v{177+2*i}, 0xffff0000, v{144+i}')
for q in range(4):
    for i in range(2*q, 2*q+2): a(f'v_pk_mul_f32 {vr(AC+2*i, 2)}, {vr(AC+2*i, 2)}, {vr(176+2*i, 2)}')
    for i in range(2*q, 2*q+2): a(f'v_pk_fma_f32 {vr(AC+2*i, 2)}, {vr(AC+2*i, 2)}, {vr(160+2*i, 2)}, {vr(XU+2*i, 2)}')
    for i in range(2*q, 2*q+2): a(f'v_cvt_pk_bf16_f32 v{152+i}, v{AC+2*i}, v{AC+1+2*i}')
    a(f'buffer_store_dwordx2 {vr(152+2*q, 2)}, {vXG}, {OUT_SRD}, {sXO} offen offset:{16*q}')
a(f's_cmp_eq_u32 {sU}, 0\ns_cbranch_scc0 L_fin')
a(f's_mov_b32 s12, {W0}')
publish('s12')
a.label('L_fin')
if PROF:
    stamp('end')
    a(f's_cmp_eq_u32 {sW}, 0\ns_cbranch_scc0 L_end')
    a(f's_lshl_b32 s12, {sB}, 8\ns_add_u32 s12, s12, {PROFB}\nv_lshlrev_b32 v22, 2, {vL}')
    a(f'buffer_store_dword {vST}, v22, {WS_SRD}, s12 offen')
    open(OUT + '.names', 'w').write(','.join(names))
a.label('L_end')
a.raw('  s_endpgm')
for k, (vaddr, vtmp) in enumerate(slow):
    a.raw(f'''L_spin{k}:
  s_mov_b32 s33, 0
L_spinl{k}:
  buffer_load_dword {vtmp}, {vaddr}, {WS_SRD}, 0 offen sc1
  s_add_u32 s33, s33, 1
  s_waitcnt vmcnt(0)
  v_cmp_ne_u32 vcc, {sTAG}, {vtmp}
  s_cbranch_vccz L_back{k}
  s_cmp_lt_u32 s33, 20000
  s_cbranch_scc1 L_spinl{k}
  s_branch L_back{k}''')
a.raw('  .fill 4096, 4, 0xbf800000')

hdr = open(f'cdna_kernels/{NAME}.s.ref').read().split('; @launch')[0]
src = hdr + f"""; @launch grid=(256,1,1) block=(256,1,1) lds={LDS_BYTES}
.amdgcn_target "amdgcn-amd-amdhsa--gfx950"
.text
.globl {NAME}_kernel
.p2align 8
.type {NAME}_kernel,@function
{NAME}_kernel:
{a.text()}.section .rodata,"a"
.p2align 6
.amdhsa_kernel {NAME}_kernel
  .amdhsa_next_free_vgpr 512
  .amdhsa_next_free_sgpr 102
  .amdhsa_accum_offset 256
  .amdhsa_group_segment_fixed_size 0
  .amdhsa_kernarg_size 136
  .amdhsa_user_sgpr_count 2
  .amdhsa_user_sgpr_kernarg_segment_ptr 1
  .amdhsa_system_sgpr_workgroup_id_x 1
.end_amdhsa_kernel
"""
open(OUT, 'w').write(src)
print('instructions', a.ninst, 'auto nops', a.auto_nops, 'max vm', a.maxvm, '->', OUT)
```
